```python
import torch

def _softmax(x, axis=-1):
    return torch.softmax(x, dim=axis)
def _gelu(x):
    return torch.nn.functional.gelu(x, approximate="tanh")
def _silu(x):
    return torch.nn.functional.silu(x)
def _sigmoid(x):
    return torch.sigmoid(x)
def _layernorm(x, axis=-1, eps=1e-5):
    m = x.mean(dim=axis, keepdim=True)
    v = x.var(dim=axis, keepdim=True, unbiased=False)
    return (x - m) / torch.sqrt(v + eps)
def _scatter_add(tgt, idx, src, axis=0):
    return tgt.clone().index_add_(axis, idx, src)
def _segment_sum(src, seg, n):
    out = torch.zeros((n,) + src.shape[1:], dtype=src.dtype)
    return out.index_add_(0, seg, src)
def _pad(x, pw):
    flat = tuple(v for pair in reversed(pw) for v in pair)
    return torch.nn.functional.pad(x, flat)

kernel_name = 'parallel_sum__mha_block__geglu_ffn__prompt'

def setup_inputs():

    _w = (lambda a: (lambda t: t.to(torch.bfloat16) if t.is_floating_point() else t)(torch.as_tensor(a)))
    def _A_setup():
        B, S, D, H = 1, 2048, 512, 32
        return {
            "x": _w((lambda *s: torch.randn(*s, dtype=torch.bfloat16) * 0.05)(B, S, D)),
            "wqkv": _w((lambda *s: torch.randn(*s, dtype=torch.bfloat16) * 0.2)(D, 3 * D)),
            "wo": _w((lambda *s: torch.randn(*s, dtype=torch.bfloat16) * 0.1)(D, D)),
        }
    _A_in = _A_setup()

    def _B_setup():
        B, S, D, F = 1, 2048, 512, 1376
        return {
            "x": _w((lambda *s: torch.randn(*s, dtype=torch.bfloat16) * 0.05)(B, S, D)),
            "w_gate": _w((lambda *s: torch.randn(*s, dtype=torch.bfloat16) * 0.1)(D, F)),
            "w_up": _w((lambda *s: torch.randn(*s, dtype=torch.bfloat16) * 0.1)(D, F)),
            "w_down": _w((lambda *s: torch.randn(*s, dtype=torch.bfloat16) * 0.1)(F, D)),
        }
    _B_in = _B_setup()

    return {
        "A_x": _A_in["x"],
        "A_wqkv": _A_in["wqkv"],
        "A_wo": _A_in["wo"],
        "B_x": _B_in["x"],
        "B_w_gate": _B_in["w_gate"],
        "B_w_up": _B_in["w_up"],
        "B_w_down": _B_in["w_down"],
    }

def reference(A_x, A_wqkv, A_wo, B_x, B_w_gate, B_w_up, B_w_down):
    def _A_ref(x, wqkv, wo):
        B, S, D = x.shape
        H = 32
        Dh = D // H
        qkv = (lambda x, *d: x.permute(*d))((x @ wqkv).reshape(B, S, 3, H, Dh), 2, 0, 3, 1, 4)
        q, k, v = qkv[0], qkv[1], qkv[2]
        scores = torch.einsum("bhqd,bhkd->bhqk", q, k) * (Dh ** -0.5)
        p = _softmax(scores, axis=-1)
        o = torch.einsum("bhqk,bhkd->bhqd", p, v)
        return (lambda x, *d: x.permute(*d))(o, 0, 2, 1, 3).reshape(B, S, D) @ wo

    def _B_ref(x, w_gate, w_up, w_down):
        return (_gelu(x @ w_gate) * (x @ w_up)) @ w_down

    x = A_x
    xn = _layernorm(x, axis=-1)
    return x + _A_ref(xn, A_wqkv, A_wo) + _B_ref(xn, B_w_gate, B_w_up, B_w_down)
```

```python
NAME = "parallel_sum__mha_block__geglu_ffn__prompt"

KA_X, KA_WQKV, KA_WO, KA_BX, KA_WG, KA_WU, KA_WD, KA_OUT, KA_DBG, KA_WS = [8 * i for i in range(10)]

WS_QKV = 0
QKV_HEAD = 64 * 3072
QKV_TILE = 3072
WS_AF = 8 << 20
AF_KSTEPS = 118
WS_PART = 16 << 20
WS_PROF = 32 << 20
WS_BYTES = 268435456


class Asm:
    def __init__(self):
        self.lines = []
        self.uid = 0

    def __call__(self, s):
        for l in s.split("\n"):
            l = l.strip()
            if l:
                self.lines.append("    " + l)

    def label(self, l):
        self.lines.append(l + ":")

    def raw(self, s):
        self.lines.append(s)

    def comment(self, s):
        self.lines.append("    ; " + s)

    def text(self):
        return "\n".join(self.lines) + "\n"

    def srd(self, d, base_lo, nbytes):
        self(f"s_mov_b32 s{d}, s{base_lo}")
        self(f"s_and_b32 s{d+1}, s{base_lo+1}, 0xffff")
        self(f"s_mov_b32 s{d+2}, {nbytes}")
        self(f"s_mov_b32 s{d+3}, 0x00020000")


def vr(a, n):
    return f"v[{a}:{a+n-1}]" if n > 1 else f"v{a}"


def ar(a, n):
    return f"a[{a}:{a+n-1}]" if n > 1 else f"a{a}"


def kernel_head(a, label):
    a.raw(".text")
    a.raw(f".globl {label}")
    a.raw(".p2align 8")
    a.raw(f".type {label},@function")
    a.label(label)


def kernel_desc(label, vgpr, agpr=0, sgpr=102):
    acc = (vgpr + 3) // 4 * 4
    nfv = acc + agpr if agpr else vgpr
    return f""".amdhsa_kernel {label}
  .amdhsa_next_free_vgpr {nfv}
  .amdhsa_next_free_sgpr {sgpr}
  .amdhsa_accum_offset {acc}
  .amdhsa_group_segment_fixed_size 0
  .amdhsa_kernarg_size 80
  .amdhsa_user_sgpr_count 2
  .amdhsa_user_sgpr_kernarg_segment_ptr 1
  .amdhsa_system_sgpr_workgroup_id_x 1
.end_amdhsa_kernel
"""


def build_file(launches, bodies, descs, header=""):
    out = []
    out.append(header.rstrip())
    for (label, grid, block, lds) in launches:
        out.append(f"; @launch kernel={label} grid=({grid},1,1) block=({block},1,1) lds={lds}")
    out.append('.amdgcn_target "amdgcn-amd-amdhsa--gfx950"')
    for b in bodies:
        out.append(b)
    out.append('.section .rodata,"a"')
    for d in descs:
        out.append(".p2align 6")
        out.append(d)
    return "\n".join(out)


def prof_start(a):
    a("s_memtime s[80:81]")
    a("s_memrealtime s[90:91]")

def prof_stamp(a, i):
    a(f"s_memtime s[{80+2*i}:{81+2*i}]")

def prof_end(a, kidx, wave_sreg, srd):
    a("s_waitcnt vmcnt(0)")
    a("s_memtime s[86:87]")
    a("s_memrealtime s[92:93]")
    a("s_waitcnt lgkmcnt(0)")
    for i in (82, 84, 86):
        a(f"s_sub_u32 s{i}, s{i}, s80")
    for j, r in enumerate((80, 82, 84, 86, 90, 92)):
        a(f"v_mov_b32 v{8+j}, s{r}")
    a("s_lshl_b32 s94, s2, 3")
    a(f"s_add_u32 s94, s94, s{wave_sreg}")
    a("s_lshl_b32 s94, s94, 5")
    a(f"s_add_u32 s94, s94, {WS_PROF + (kidx << 20)}")
    a(f"s_mov_b32 s{srd+2}, 0x4000000")
    a("v_mov_b32 v16, 0")
    a(f"buffer_store_dwordx4 v[8:11], v16, s[{srd}:{srd+3}], s94 offen")
    a(f"buffer_store_dwordx2 v[12:13], v16, s[{srd}:{srd+3}], s94 offen offset:16")
```

```python
from common import *
import struct

def f2u(f):
    return struct.unpack("<I", struct.pack("<f", f))[0]

CQ = 0.25 * 1.4426950408889634
GC0 = -2.0 * 1.4426950408889634 * 0.7978845608028654
GC1 = GC0 * 0.044715
M_OFFSET = 96.0

WS_FLAG = 16 << 20
WS_SIZE = 17 << 20
L_X = 0
L_RING = 65536
L_XCS, L_XST, L_XVT = 65536, 65536 + 2048, 65536 + 4096
L_KV = 65536
KV_SZ = 20480
L_MISC = 106496
L_FR = 106752
FR_SLOT, FR_UP = 5632, 28288
LDS_BYTES = 163840
R_X, R_WQ, R_WS, R_WG, R_WU, R_WD, R_WO, R_OUT, R_DBG = 24, 28, 32, 36, 40, 44, 48, 52, 56
def sr(r):
    return f"s[{r}:{r+3}]"
SPIN_MAX = 1 << 18


def gen(label=NAME + "_kernel", prof=False, force_fallback=False, prio_ffn=3, prio_att=0, dbg="", poll_one=True, poll_sleep=1):
    a = Asm()
    kernel_head(a, label)
    L = "L"
    def stamp(i):
        if prof:
            a(f"s_memtime s[{76+2*i}:{77+2*i}]")
    def prof_end():
        if not prof:
            return
        a("s_waitcnt vmcnt(0)")
        a("s_memtime s[94:95]")
        a("s_memrealtime s[98:99]")
        a("s_waitcnt lgkmcnt(0)")
        for i in range(1, 10):
            a(f"s_sub_u32 s{76+2*i}, s{76+2*i}, s76")
        for i in range(10):
            a(f"v_mov_b32 v{8+i}, s{76+2*i}")
        a("v_mov_b32 v18, s96")
        a("v_mov_b32 v19, s98")
        a("s_mul_i32 s100, s2, 12")
        a("s_add_u32 s100, s100, s3")
        a("s_lshl_b32 s100, s100, 6")
        a(f"s_add_u32 s100, s100, {WS_PROF}")
        a(f"s_mov_b32 s{R_WS+2}, 0x4000000")
        a("v_mov_b32 v20, 0")
        a(f"buffer_store_dwordx4 v[8:11], v20, {sr(R_WS)}, s100 offen")
        a(f"buffer_store_dwordx4 v[12:15], v20, {sr(R_WS)}, s100 offen offset:16")
        a(f"buffer_store_dwordx4 v[16:19], v20, {sr(R_WS)}, s100 offen offset:32")

    V_DW, V_DX = 4, 5
    V_AX, V_AW = 8, 12
    V_NX = 20
    V_SEL, V_S1, V_S2, V_CS = 24, 28, 32, 36
    T = 40
    V_ACC = 56
    V_XB, V_WB = [72, 104], [88, 120]
    E_CW, E_CR, E_SW, E_SR, E_VW, E_VR, E_VS, E_Z = range(136, 144)
    F_D = 164
    if prof:
        a("s_memtime s[76:77]")
        a("s_memrealtime s[96:97]")
    a(f"s_load_dwordx2 s[{R_X}:{R_X+1}], s[0:1], {KA_X}")
    a(f"s_load_dwordx2 s[{R_WQ}:{R_WQ+1}], s[0:1], {KA_WQKV}")
    a("s_cmp_ge_u32 s2, 256")
    a(f"s_cbranch_scc1 {L}_end")
    a(f"v_lshrrev_b32 v{T}, 6, v0")
    a("v_and_b32 v1, 63, v0")
    a(f"v_readfirstlane_b32 s3, v{T}")
    a("s_and_b32 s4, s2, 3")
    a("s_lshl_b32 s4, s4, 3")
    a("s_bfe_u32 s8, s2, 0x30003")
    a("s_add_u32 s4, s4, s8")
    a("s_and_b32 s5, s2, 4")
    a("s_lshr_b32 s8, s2, 6")
    a("s_add_u32 s5, s5, s8")
    a(f"v_lshrrev_b32 v{T}, 3, v0")
    a(f"v_and_b32 v{T+1}, 7, v0")
    a(f"v_bfe_u32 v{T+2}, v0, 4, 3")
    a(f"v_xor_b32 v{T+3}, v{T+1}, v{T+2}")
    a(f"v_lshlrev_b32 v{T+3}, 4, v{T+3}")
    a(f"v_lshl_add_u32 v{V_DX}, v{T}, 10, v{T+3}")
    a(f"v_and_b32 v{T+2}, 1, v{T+2}")
    a(f"v_lshlrev_b32 v{T+2}, 2, v{T+2}")
    a(f"v_xor_b32 v{T+3}, v{T+1}, v{T+2}")
    a(f"v_mul_u32_u24 v{T}, 3072, v{T}")
    a(f"v_lshl_add_u32 v{V_DW}, v{T+3}, 4, v{T}")
    a("s_lshl_b32 s8, s5, 1")
    a("s_add_u32 s10, s4, s8")
    a("s_and_b32 s10, s10, 7")
    a("s_mov_b32 s11, s10")
    a("s_lshl_b32 s12, s4, 16")
    a("s_lshl_b32 s13, s5, 7")
    a("s_mul_i32 s14, s3, 3072")
    a(f"s_add_u32 s14, s14, {L_RING}")
    a("s_lshl_b32 s15, s3, 10")
    a("s_mov_b32 s16, s14")
    a(f"s_mov_b32 s{R_X+2}, {2048*512*2}")
    a(f"s_mov_b32 s{R_X+3}, 0x20000")
    a(f"s_mov_b32 s{R_WQ+2}, {512*1536*2}")
    a(f"s_mov_b32 s{R_WQ+3}, 0x20000")
    a("s_cmp_ge_u32 s3, 8")
    a("s_waitcnt lgkmcnt(0)")
    a(f"s_cbranch_scc1 {L}_a_nopro")
    a.label(f"{L}_a_pro")
    a("s_mov_b32 m0, s15")
    a("s_lshl_b32 s8, s11, 7")
    a("s_add_u32 s8, s8, s12")
    a(f"s_mul_i32 s9, s11, {64*3072}")
    a(f"buffer_load_dwordx4 v{V_DX}, {sr(R_X)}, s8 offen lds")
    a("s_mov_b32 m0, s16")
    a("s_add_u32 s9, s9, s13")
    a("s_add_u32 s11, s11, 1")
    for g in range(3):
        a(f"buffer_load_dwordx4 v{V_DW}, {sr(R_WQ)}, s9 offen offset:{1024*g} lds")
    a("s_and_b32 s11, s11, 7")
    a("s_add_u32 s16, s16, 24576")
    a("s_add_u32 s15, s15, 8192")
    a("s_cmp_lt_u32 s15, 32768")
    a(f"s_cbranch_scc1 {L}_a_pro")
    for i in range(4):
        a("s_mov_b32 m0, s15")
        a("s_lshl_b32 s8, s11, 7")
        a("s_add_u32 s8, s8, s12")
        a(f"s_mul_i32 s{60+i}, s11, {64*3072}")
        a(f"buffer_load_dwordx4 v{V_DX}, {sr(R_X)}, s8 offen lds")
        a(f"s_add_u32 s{60+i}, s{60+i}, s13")
        if i < 3:
            a("s_add_u32 s15, s15, 8192")
            a("s_add_u32 s11, s11, 1")
            a("s_and_b32 s11, s11, 7")
    a.label(f"{L}_a_nopro")
    for r, ka in ((R_WS, KA_WS), (R_DBG, KA_DBG), (R_WG, KA_WG), (R_WU, KA_WU), (R_WD, KA_WD), (R_WO, KA_WO), (R_OUT, KA_OUT)):
        a(f"s_load_dwordx2 s[{r}:{r+1}], s[0:1], {ka}")
    a("s_memrealtime s[8:9]")
    for r, n in ((R_WS, WS_SIZE), (R_DBG, 256), (R_WG, 512*1376*2), (R_WD, 1376*512*2), (R_WO, 512*512*2), (R_OUT, 2048*512*2)):
        a(f"s_mov_b32 s{r+2}, {n}")
        a(f"s_mov_b32 s{r+3}, 0x20000")
    a("v_lshlrev_b32 v2, 4, v1")
    a("s_and_b32 s17, s3, 1")
    a("s_lshr_b32 s18, s3, 1")
    a("s_xor_b32 s19, s17, s18")
    a("s_and_b32 s19, s19, 1")
    a("s_lshl_b32 s19, s19, 1")
    a(f"v_and_b32 v{T}, 31, v1")
    a(f"v_lshrrev_b32 v{T+1}, 5, v1")
    a(f"v_bfe_u32 v{T+2}, v1, 1, 3")
    a(f"v_xor_b32 v{T+2}, v{T+2}, v{T+1}")
    a(f"v_lshlrev_b32 v{T+3}, 7, v{T}")
    a(f"v_lshl_add_u32 v3, v{T+2}, 4, v{T+3}")
    a("s_lshl_b32 s20, s17, 12")
    a("s_lshl_b32 s21, s19, 5")
    a("s_or_b32 s21, s20, s21")
    a(f"v_xor_b32 v{V_AX}, s21, v3")
    for q in range(1, 4):
        a(f"v_xor_b32 v{V_AX+q}, {32*q}, v{V_AX}")
    a("s_and_b32 s21, s18, 3")
    a("s_lshl_b32 s21, s21, 5")
    a("s_add_u32 s22, s18, 6")
    a("s_lshl_b32 s22, s22, 13")
    a("s_cmp_ge_u32 s3, 4")
    a("s_cselect_b32 s21, s21, s22")
    a("s_cselect_b32 s22, 8192, 32")
    a("s_cselect_b32 s70, 0, 64")
    a("s_cselect_b32 s71, 16384, 0")
    a("s_cselect_b32 s72, 3, 2")
    a("s_or_b32 s21, s20, s21")
    a(f"v_xor_b32 v{V_NX}, s21, v3")
    a(f"v_xor_b32 v{V_NX+1}, s22, v{V_NX}")
    a("s_lshl_b32 s21, s18, 8")
    a(f"s_add_u32 s21, s21, {L_XCS}")
    a(f"v_lshl_add_u32 v{E_CR}, v{T}, 3, s21")
    a("s_lshl_b32 s21, s17, 2")
    a(f"v_add_u32 v{E_CW}, s21, v{E_CR}")
    a("s_lshl_b32 s21, s17, 9")
    a(f"s_add_u32 s21, s21, {L_XST}")
    a(f"v_lshl_add_u32 v{E_SR}, v{T}, 4, s21")
    a("s_and_b32 s20, s18, 1")
    a("s_lshl_b32 s21, s20, 3")
    a(f"v_add_u32 v{E_SW}, s21, v{E_SR}")
    a(f"s_mov_b32 s21, {L_MISC}")
    a(f"v_lshl_add_u32 v6, v{T}, 2, s21")
    a(f"v_mov_b32 v{E_Z}, 0")
    a(f"v_bfe_u32 v{T+4}, v1, 4, 1")
    a(f"v_and_b32 v{T+3}, 3, v1")
    a(f"v_lshlrev_b32 v{T+5}, 3, v{T+3}")
    a(f"v_lshl_add_u32 v{T+5}, v{T+4}, 5, v{T+5}")
    a(f"v_bfe_u32 v{T+6}, v1, 2, 2")
    a(f"v_mul_u32_u24 v{T+2}, 3072, v{T+1}")
    a(f"v_lshl_add_u32 v{T+2}, v{T+6}, 7, v{T+2}")
    a(f"v_bfe_u32 v{T+3}, v1, 3, 1")
    a(f"v_xor_b32 v{T+3}, s20, v{T+3}")
    a(f"v_lshl_add_u32 v{T+2}, v{T+3}, 6, v{T+2}")
    a(f"v_add_u32 v{T+2}, v{T+2}, v{T+5}")
    a("s_lshr_b32 s22, s18, 1")
    a("s_lshl_b32 s22, s22, 10")
    a(f"s_sub_u32 s22, {L_RING + 2048}, s22")
    for q in range(4):
        a(f"s_xor_b32 s21, s19, {q}")
        a("s_mul_i32 s21, s21, 6144")
        a("s_add_u32 s21, s21, s22")
        a(f"v_add_u32 v{V_AW+q}, s21, v{T+2}")
        a(f"v_add_u32 v{V_AW+4+q}, 49152, v{V_AW+q}")
    a("s_lshl_b32 s21, s3, 11")
    a(f"s_add_u32 s21, s21, {L_XVT}")
    a(f"v_lshlrev_b32 v{E_VW}, 6, v{T}")
    a(f"v_lshl_add_u32 v{E_VW}, v{T+1}, 3, v{E_VW}")
    a(f"v_add_u32 v{E_VW}, s21, v{E_VW}")
    a(f"v_lshl_add_u32 v{E_VR}, v{T+1}, 2, v{T+6}")
    a(f"v_lshl_add_u32 v{E_VR}, v{E_VR}, 6, v{T+5}")
    a(f"v_add_u32 v{E_VR}, s21, v{E_VR}")
    a(f"v_mul_u32_u24 v{E_VS}, {QKV_HEAD}, v{T+4}")
    a(f"v_lshl_add_u32 v{E_VS}, v{T+1}, 9, v{E_VS}")
    a(f"v_and_b32 v{T+3}, 15, v1")
    a(f"v_lshl_add_u32 v{E_VS}, v{T+3}, 4, v{E_VS}")
    a("s_lshl_b32 s73, s4, 1")
    a("s_add_u32 s73, s73, s17")
    a(f"s_mul_i32 s73, s73, {QKV_TILE}")
    a("s_lshl_b32 s21, s5, 1")
    a("s_add_u32 s21, s21, s20")
    a(f"s_mul_i32 s21, s21, {2*QKV_HEAD}")
    a("s_add_u32 s73, s73, s21")
    a("s_cmp_ge_u32 s3, 8")
    a(f"s_cselect_b32 s75, 0x{f2u(CQ):08x}, 1.0")
    a("s_cselect_b32 s21, 2048, 0")
    a("s_add_u32 s73, s73, s21")
    a(f"s_add_u32 s74, s73, {QKV_HEAD}")
    a(f"v_bfe_u32 v{T+3}, v1, 2, 1")
    a(f"v_cmp_eq_u32 vcc, v{T+3}, v{T+4}")
    a(f"v_mov_b32 v{T+3}, 0x3f803f80")
    a(f"v_mov_b32 v{T+4}, -1")
    for i in range(4):
        a(f"v_cndmask_b32 v{V_SEL+i}, 0, v{T+3}, vcc")
    for i in range(V_S1, V_S1 + 12, 2):
        a(f"v_mov_b64 {vr(i,2)}, 0")
    for i in range(0, 16, 2):
        a(f"v_mov_b64 {vr(V_ACC+i,2)}, 0")
    a(f"v_mov_b64 {vr(F_D,2)}, 0")
    a(f"v_mov_b32 v{F_D+2}, 0")
    a("s_mov_b64 vcc, 0")
    a("s_waitcnt lgkmcnt(0)")
    a("s_cmp_lt_u32 s3, 8")
    a(f"s_cbranch_scc1 {L}_a_nopois")
    a("s_mov_b64 vcc, -1")
    for i in range(5, 8):
        a(f"v_mov_b32 v{T+i}, -1")
    a("s_lshl_b32 s20, s4, 1")
    a("s_add_u32 s20, s20, s17")
    a(f"s_mul_i32 s20, s20, {AF_KSTEPS}")
    a("s_lshl_b32 s21, s5, 2")
    a("s_add_u32 s20, s20, s21")
    a("s_and_b32 s21, s3, 2")
    a("s_add_u32 s20, s20, s21")
    a("s_lshl_b32 s20, s20, 10")
    a(f"s_add_u32 s20, s20, {WS_AF}")
    a(f"buffer_store_dwordx4 {vr(T+4,4)}, v2, {sr(R_WS)}, s20 offen sc1")
    a(f"buffer_store_dwordx4 {vr(T+4,4)}, v2, {sr(R_WS)}, s20 offen offset:1024 sc1")
    a("s_sub_u32 s7, s3, 8")
    a("s_mul_i32 s60, s5, 11")
    a("s_min_u32 s60, s60, 75")
    a("s_lshl_b32 s20, s60, 5")
    a(f"s_mul_i32 s21, s21, {4*2752}")
    a("s_add_u32 s20, s20, s21")
    a("s_movk_i32 s21, 2752")
    for i in range(3):
        a(f"v_add_u32 v{T+10}, {64*i}, v1")
        a(f"v_mul_u32_u24 v{T+8}, 745, v{T+10}")
        a(f"v_lshrrev_b32 v{T+8}, 14, v{T+8}")
        a(f"v_mul_u32_u24 v{T+9}, 22, v{T+8}")
        a(f"v_sub_u32 v{T+9}, v{T+10}, v{T+9}")
        a(f"v_lshl_add_u32 v{T+9}, v{T+9}, 4, s20")
        a(f"v_mad_u32_u24 v{F_D+i}, v{T+8}, s21, v{T+9}")
        if i:
            a(f"v_subrev_u32 v{F_D+i}, {1024*i}, v{F_D+i}")
    a("s_mul_i32 s20, s7, 3")
    a("s_add_u32 s60, s60, s20")
    a("s_lshr_b32 s20, s7, 1")
    a(f"s_mul_i32 s61, s20, {FR_SLOT // 2}")
    a(f"s_mul_i32 s20, s17, {FR_UP}")
    a("s_add_u32 s61, s61, s20")
    a(f"s_add_u32 s61, s61, {L_FR}")
    a(f"s_add_u32 s62, s61, {5 * FR_SLOT}")
    a("s_mov_b32 s64, s61")
    a(f"s_mul_i32 s63, s10, {64*2752}")
    a("s_cmp_eq_u32 s17, 1")
    a(f"s_cselect_b32 s{R_WG}, s{R_WU}, s{R_WG}")
    a(f"s_cselect_b32 s{R_WG+1}, s{R_WU+1}, s{R_WG+1}")
    a("s_mov_b32 s66, -1")
    a("s_mov_b32 s67, 0xffff")
    a("s_lshl_b32 s20, s2, 4")
    a("s_add_u32 s20, s20, s3")
    a("s_cmp_lg_u32 s20, 8")
    a(f"s_cbranch_scc1 {L}_a_nopois")
    a("s_or_b32 s8, s8, 1")
    a(f"v_mov_b32 v{T+8}, s8")
    a("s_mov_b64 exec, 1")
    a(f"buffer_store_dword v{T+8}, v{E_Z}, {sr(R_DBG)}, 0 offen sc1")
    a("s_mov_b64 exec, -1")
    a.label(f"{L}_a_nopois")

    def reads_a(c, qs):
        b = c % 2
        for q in qs:
            a(f"ds_read_b128 {vr(V_XB[b]+4*q,4)}, v{V_AX+q} offset:{8192*c}")
            for e in range(2):
                a(f"ds_read_b64_tr_b16 {vr(V_WB[b]+4*q+2*e,2)}, v{V_AW+q+(4 if c & 2 else 0)} offset:{24576*(c&1) + 512*e}")

    def mm_a(b, q):
        a(f"v_mfma_f32_32x32x16_bf16 {vr(V_ACC,16)}, {vr(V_WB[b]+4*q,4)}, {vr(V_XB[b]+4*q,4)}, {vr(V_ACC,16)}")

    def cs_a(b, q):
        a(f"v_mfma_f32_16x16x32_bf16 {vr(V_CS,4)}, {vr(V_SEL,4)}, {vr(V_WB[b]+4*q,4)}, {vr(V_CS,4)}")

    def stat_a(b):
        for q in range(2):
            a(f"v_mfma_f32_16x16x32_bf16 {vr(V_S1,4)}, {vr(V_SEL,4)}, {vr(V_XB[b]+4*q,4)}, {vr(V_S1,4)}")
        for d in range(8):
            a(f"v_dot2c_f32_bf16 v{V_S2+d%2}, v{V_XB[b]+d}, v{V_XB[b]+d}")

    allow = [16, 12, 11, 10, 6, 6, 3, 0]
    a(f"s_waitcnt vmcnt({allow[0]})")
    a("s_barrier")
    stamp(1)
    reads_a(0, range(4))
    for c in range(1, 8):
        p = (c - 1) % 2
        a("s_waitcnt lgkmcnt(0)")
        mm_a(p, 0)
        cs_a(p, 0)
        a(f"s_waitcnt vmcnt({allow[c]})")
        a("s_barrier")
        mm_a(p, 1)
        reads_a(c, [0, 1])
        cs_a(p, 1)
        reads_a(c, [2, 3])
        mm_a(p, 2)
        a(f"s_cbranch_vccz {L}_a_d{c}")
        stat_a(p)
        if c <= 4:
            a(f"s_branch {L}_a_e{c}")
        a.label(f"{L}_a_d{c}")
        if c <= 4:
            a(f"s_add_u32 m0, s14, {24576 * ((c - 1) & 3)}")
            a("s_nop 0")
            for g in range(3):
                a(f"buffer_load_dwordx4 v{V_DW}, {sr(R_WQ)}, s{60+c-1} offen offset:{1024*g} lds")
            a.label(f"{L}_a_e{c}")
        mm_a(p, 3)
    a(f"buffer_load_dword v7, v{E_Z}, {sr(R_DBG)}, 0 offen sc1")
    a("s_waitcnt lgkmcnt(0)")
    stamp(2)
    cs_a(1, 0)
    cs_a(1, 1)
    a(f"s_cbranch_vccz {L}_a_nost")
    a("s_setprio 2")
    stat_a(1)
    a("s_nop 2")
    a(f"v_add_f32 v{V_S2}, v{V_S2}, v{V_S2+1}")
    a(f"v_mov_b32 v{V_S2+1}, v{V_S2}")
    a(f"ds_write_b32 v6, v{E_Z}")
    a("s_nop 0")
    a(f"v_permlane32_swap_b32 v{V_S2+1}, v{V_S2}")
    a("s_nop 0")
    a(f"v_add_f32 v{V_S1+1}, v{V_S2}, v{V_S2+1}")
    a(f"ds_write_b64 v{E_SW}, {vr(V_S1,2)}")
    a("s_setprio 0")
    a.label(f"{L}_a_nost")
    mm_a(1, 0)
    a("s_nop 6")
    a(f"ds_write_b32 v{E_CW}, v{V_CS}")
    mm_a(1, 1)
    a("s_waitcnt lgkmcnt(0)")
    a("s_barrier")
    XB = V_XB[0]
    a(f"ds_read_b128 {vr(XB,4)}, v{E_SR}")
    a(f"ds_read_b64 {vr(V_CS,2)}, v{E_CR}")
    mm_a(1, 2)
    V_M = V_WB[0]
    V_MEAN, V_VAR, V_RS = 34, 35, 33
    a("v_cmp_gt_u32 vcc, 32, v1")
    a(f"v_mov_b64 {vr(V_M+2,2)}, 0")
    a("s_waitcnt lgkmcnt(0)")
    a(f"v_add_f32 v{XB}, v{XB}, v{XB+2}")
    a(f"v_add_f32 v{XB+1}, v{XB+1}, v{XB+3}")
    c = V_CS
    a(f"v_add_f32 v{c+2}, v{c}, v{c+1}")
    a(f"v_mul_f32 v{V_MEAN}, 0xbb000000, v{XB}")
    a(f"v_cvt_pk_bf16_f32 v{c}, v{c+2}, v{c+2}")
    a(f"v_cvt_pk_bf16_f32 v{T+7}, v{V_MEAN}, v{V_MEAN}")
    a(f"v_and_b32 v{c+3}, 0xffff0000, v{c}")
    a(f"v_and_b32 v{T+7}, 0xffff0000, v{T+7}")
    mm_a(1, 3)
    a(f"v_sub_f32 v{c+2}, v{c+2}, v{c+3}")
    a(f"v_sub_f32 v{T+8}, v{V_MEAN}, v{T+7}")
    a(f"v_cvt_pk_bf16_f32 v{c+1}, v{c+2}, v{c+2}")
    a(f"v_cvt_pk_bf16_f32 v{T+7}, v{T+7}, v{T+8}")
    a(f"v_mov_b64 {vr(c+2,2)}, 0")
    a(f"v_cndmask_b32 v{V_M}, 0, v{T+7}, vcc")
    a(f"v_cndmask_b32 v{V_M+1}, 0, v{T+7}, vcc")
    a(f"v_mul_f32 v{V_VAR}, 0x3b000000, v{XB+1}")
    a(f"v_fma_f32 v{V_VAR}, -v{V_MEAN}, v{V_MEAN}, v{V_VAR}")
    a(f"v_mfma_f32_32x32x16_bf16 {vr(V_ACC,16)}, {vr(c,4)}, {vr(V_M,4)}, {vr(V_ACC,16)}")
    a(f"v_max_f32 v{V_VAR}, 0, v{V_VAR}")
    a(f"v_add_f32 v{V_VAR}, 0x{f2u(1e-5):08x}, v{V_VAR}")
    a(f"v_rsq_f32 v{V_RS}, v{V_VAR}")
    a("s_cmp_ge_u32 s3, 4")
    a(f"v_mul_f32 v{T+8}, s75, v{V_RS}")
    a(f"v_mov_b32 v32, v{V_RS}")
    a(f"v_mov_b32 v{T+9}, v{T+8}")
    a(f"v_mul_f32 v{V_MEAN}, v{V_MEAN}, v{V_RS}")
    a(f"v_mov_b32 v{V_VAR}, v{V_MEAN}")
    a("s_nop 2")
    P = V_XB[1]
    for r in range(0, 16, 2):
        a(f"v_pk_mul_f32 {vr(V_ACC+r,2)}, {vr(V_ACC+r,2)}, {vr(T+8,2)}")
    for r in range(8):
        a(f"v_cvt_pk_bf16_f32 v{P+r}, v{V_ACC+2*r}, v{V_ACC+2*r+1}")
    a(f"s_cbranch_scc1 {L}_a_qk")
    for g in range(4):
        a(f"ds_write_b64 v{E_VW}, {vr(P+2*g,2)} offset:{16*g}")
    for q in range(4):
        a(f"ds_read_b64_tr_b16 {vr(P+8+2*q,2)}, v{E_VR} offset:{512*q}")
    a("s_waitcnt lgkmcnt(0)")
    a(f"buffer_store_dwordx4 {vr(P+8,4)}, v{E_VS}, {sr(R_WS)}, s73 offen offset:1024 sc1")
    a(f"buffer_store_dwordx4 {vr(P+12,4)}, v{E_VS}, {sr(R_WS)}, s73 offen offset:1280 sc1")
    a(f"s_branch {L}_a_norm")
    a.label(f"{L}_a_qk")
    a(f"buffer_store_dwordx4 {vr(P,4)}, v2, {sr(R_WS)}, s73 offen sc1")
    a(f"buffer_store_dwordx4 {vr(P+4,4)}, v2, {sr(R_WS)}, s74 offen sc1")
    a.label(f"{L}_a_norm")
    stamp(3)
    N0, N1 = V_XB[0], V_WB[1]
    a.label(f"{L}_a_nl")
    a(f"ds_read_b128 {vr(N0,4)}, v{V_NX}")
    a(f"ds_read_b128 {vr(N0+4,4)}, v{V_NX+1}")
    for i in range(2):
        a(f"s_waitcnt lgkmcnt({1-i})")
        for d in range(4):
            a(f"v_lshlrev_b32 v{N1+2*d}, 16, v{N0+4*i+d}")
            a(f"v_and_b32 v{N1+2*d+1}, 0xffff0000, v{N0+4*i+d}")
        for d in range(4):
            a(f"v_pk_fma_f32 {vr(N1+2*d,2)}, {vr(N1+2*d,2)}, v[32:33], v[34:35]")
        for d in range(4):
            a(f"v_cvt_pk_bf16_f32 v{N0+8+4*i+d}, v{N1+2*d}, v{N1+2*d+1}")
        a(f"ds_write_b128 v{V_NX+i}, {vr(N0+8+4*i,4)}")
        a(f"v_xor_b32 v{V_NX+i}, s70, v{V_NX+i}")
        a(f"v_add_u32 v{V_NX+i}, s71, v{V_NX+i}")
    a("s_sub_u32 s72, s72, 1")
    a("s_cmp_lg_u32 s72, 0")
    a(f"s_cbranch_scc1 {L}_a_nl")

    def dma_f():
        return ["s_mov_b32 m0, s64", f"s_add_u32 s64, s64, {FR_SLOT}",
                f"buffer_load_dwordx4 v{F_D}, {sr(R_WG)}, s63 offen lds",
                f"buffer_load_dwordx4 v{F_D+1}, {sr(R_WG)}, s63 offen offset:1024 lds",
                "s_mov_b64 exec, s[66:67]",
                f"buffer_load_dwordx4 v{F_D+2}, {sr(R_WG)}, s63 offen offset:2048 lds",
                "s_mov_b64 exec, -1", f"s_add_u32 s63, s63, {16*2752}",
                f"s_cmp_eq_u32 s63, {512*2752}", "s_cselect_b32 s63, 0, s63",
                "s_cmp_eq_u32 s64, s62", "s_cselect_b32 s64, s61, s64"]

    a("s_cmp_lt_u32 s3, 8")
    a(f"s_cbranch_scc1 {L}_a_nof")
    a.label(f"{L}_a_fp")
    for l in dma_f():
        a(l)
    a(f"s_cbranch_scc0 {L}_a_fp")
    a.label(f"{L}_a_nof")
    stamp(4)
    a("s_waitcnt vmcnt(0) lgkmcnt(0)")
    stamp(5)
    a("v_readfirstlane_b32 s6, v7")
    a("s_barrier")
    a(f"s_mov_b32 s22, {SPIN_MAX}")
    a.label(f"{L}_tag")
    a("s_cmp_lg_u32 s6, 0")
    a(f"s_cbranch_scc1 {L}_tagok")
    a(f"buffer_load_dword v7, v{E_Z}, {sr(R_DBG)}, 0 offen sc1")
    a("s_sub_u32 s22, s22, 1")
    a("s_waitcnt vmcnt(0)")
    a("v_readfirstlane_b32 s6, v7")
    a("s_cmp_lg_u32 s22, 0")
    a(f"s_cbranch_scc1 {L}_tag")
    a.label(f"{L}_tagok")
    a("s_cmp_ge_u32 s3, 8")
    a(f"s_cbranch_scc1 {L}_ffn")
    a("s_cmp_lg_u32 s3, 0")
    a(f"s_cbranch_scc1 {L}_att")
    a("s_lshl_b32 s8, s5, 5")
    a("s_add_u32 s8, s8, s4")
    a("s_lshl_b32 s8, s8, 2")
    a(f"s_add_u32 s8, s8, {WS_FLAG}")
    a("s_mov_b64 exec, 1")
    a(f"buffer_store_dword v7, v{E_Z}, {sr(R_WS)}, s8 offen sc1")
    a("s_mov_b64 exec, -1")

    def poll_line(name, sbase, vtmp):
        a(f"v_and_b32 v{vtmp}, 31, v1")
        a(f"v_lshlrev_b32 v{vtmp}, 2, v{vtmp}")
        a(f"s_mov_b32 s22, {SPIN_MAX}")
        a.label(f"{name}")
        a(f"buffer_load_dword v{vtmp+1}, v{vtmp}, {sr(R_WS)}, {sbase} offen sc1")
        a("s_sub_u32 s22, s22, 1")
        a("s_waitcnt vmcnt(0)")
        a(f"v_cmp_ne_u32 vcc, s6, v{vtmp+1}")
        a(f"s_cbranch_vccz {name}_ok")
        a(f"s_sleep {poll_sleep}")
        a("s_cmp_lg_u32 s22, 0")
        a(f"s_cbranch_scc1 {name}")
        a.label(f"{name}_ok")

    a.label(f"{L}_att")
    SA, SB, CA, CB, OA, OB, QA, QB = 8, 24, 40, 56, 72, 88, 104, 108
    KB = [112, 116]
    VB = [120, 128]
    V_AD, V_K, V_C, V_PW, V_PR = 136, 137, 138, 139, 140
    TT = 144
    if prio_att:
        a(f"s_setprio {prio_att}")
    a("s_and_b32 s60, s2, 31")
    a("s_lshr_b32 s61, s2, 5")
    a("s_and_b32 s62, s3, 3")
    a("s_lshr_b32 s63, s3, 2")
    a("s_mov_b32 s64, 1")
    a("s_mov_b32 s66, 0x0000ffff")
    a("s_mov_b32 s67, 0x0000ffff")
    a("s_lshl_b32 s71, s61, 3")
    a("s_lshl_b32 s8, s62, 1")
    a("s_add_u32 s71, s71, s8")
    a(f"s_mul_i32 s69, s60, {QKV_HEAD}")
    a(f"s_mul_i32 s8, s71, {QKV_TILE}")
    a("s_add_u32 s68, s69, s8")
    a("s_add_u32 s68, s68, 2048")
    a(f"s_mul_i32 s8, s63, {32 * QKV_TILE}")
    a("s_add_u32 s70, s69, s8")
    a(f"s_mul_i32 s9, s61, {4 * QKV_TILE}")
    a("s_add_u32 s69, s69, s9")
    a("s_lshr_b32 s8, s62, 1")
    a(f"s_mul_i32 s8, s8, {QKV_TILE}")
    a("s_and_b32 s10, s62, 1")
    a("s_lshl_b32 s10, s10, 10")
    a("s_add_u32 s8, s8, s10")
    a("s_add_u32 s12, s70, s8")
    a(f"s_add_u32 s13, s12, {32 * QKV_TILE}")
    a("s_add_u32 s72, s12, s9")
    a(f"s_mul_i32 s14, s63, {KV_SZ}")
    a(f"s_add_u32 s14, s14, {L_KV}")
    a(f"s_add_u32 s15, s14, {KV_SZ}")
    a("s_mov_b32 s75, s14")
    a("s_lshl_b32 s8, s62, 10")
    a("s_add_u32 s16, s14, s8")
    a("s_add_u32 s17, s15, s8")
    a("s_mov_b32 s74, s16")
    a("s_lshl_b32 s8, s3, 2")
    a(f"s_add_u32 s8, s8, {L_MISC}")
    a(f"v_mov_b32 v{V_PW}, s8")
    a("s_and_b32 s8, s8, 0xfffffff0")
    a(f"v_and_b32 v{V_PR}, 3, v1")
    a(f"v_lshl_add_u32 v{V_PR}, v{V_PR}, 2, s8")
    a(f"v_mov_b32 v{V_K}, 1")
    a("s_mov_b32 s73, 0")
    a("s_lshr_b32 s8, s60, 2")
    a("s_lshl_b32 s8, s8, 7")
    a(f"s_add_u32 s8, s8, {WS_FLAG}")

    def att_init():
        a(f"v_mov_b32 v{TT}, 0x3f803f80")
        a(f"v_mov_b32 v{TT+1}, 0x3f803f80")
        for i in range(0, 16, 2):
            a(f"v_mov_b64 {vr(VB[0]+i,2)}, {vr(TT,2)}")
        for i in range(0, 32, 2):
            a(f"v_mov_b64 {vr(OA+i,2)}, 0")

    def kv_dma():
        return ["s_mov_b32 m0, s74", "s_add_u32 s74, s74, 4096",
                f"buffer_load_dwordx4 v2, {sr(R_WS)}, s72 offen sc1 lds",
                "s_cmp_eq_u32 s74, s17", "s_cselect_b32 s74, s16, s74",
                f"s_add_u32 s72, s72, {2 * QKV_TILE}", "s_cmp_eq_u32 s72, s13", "s_cselect_b32 s72, s12, s72"]

    def kv_reads(p):
        return [f"ds_read_b128 {vr(KB[p],4)}, v{V_AD} offset:{2048*p}", "s_mov_b64 exec, s[66:67]",
                f"ds_read_b128 {vr(VB[p],4)}, v{V_AD} offset:{2048*p+1024}",
                f"ds_read_b128 {vr(VB[p]+4,4)}, v{V_AD} offset:{2048*p+1280}", "s_mov_b64 exec, -1"]

    def spin(name):
        a.label(f"{name}")
        a(f"ds_read_b32 v{V_C}, v{V_PR}")
        a("s_waitcnt lgkmcnt(0)")
        a(f"v_cmp_lt_u32 vcc, v{V_C}, v{V_K}")
        a(f"s_cbranch_vccnz {name}")

    def rowmax(S, dst):
        a(f"v_max3_f32 v{dst}, v{S}, v{S+1}, v{S+2}")
        for i in range(3, 15, 2):
            a(f"v_max3_f32 v{dst}, v{dst}, v{S+i}, v{S+i+1}")
        a(f"v_max_f32 v{dst}, v{dst}, v{S+15}")

    def crosshalf_max(r0, r1, t0, t1):
        a(f"v_mov_b32 v{t0}, v{r0}")
        a(f"v_mov_b32 v{t1}, v{r1}")
        a("s_nop 1")
        a(f"v_permlane32_swap_b32 v{t0}, v{r0}")
        a(f"v_permlane32_swap_b32 v{t1}, v{r1}")
        a("s_nop 1")
        a(f"v_max_f32 v{r0}, v{r0}, v{t0}")
        a(f"v_max_f32 v{r1}, v{r1}, v{t1}")

    att_init()
    a(f"v_add_u32 v{V_AD}, s75, v2")
    if poll_one:
        a(f"v_mov_b32 v{TT+2}, {L_MISC + 96}")
        a("s_cmp_eq_u32 s3, 7")
        a(f"s_cbranch_scc1 {L}_qp7")
        a.label(f"{L}_qw")
        a("s_sleep 1")
        a(f"ds_read_b32 v{TT+3}, v{TT+2}")
        a("s_waitcnt lgkmcnt(0)")
        a(f"v_cmp_eq_u32 vcc, 0, v{TT+3}")
        a(f"s_cbranch_vccnz {L}_qw")
        a(f"s_branch {L}_qgo")
        a.label(f"{L}_qp7")
    poll_line(f"{L}_qpoll", "s8", TT)
    if poll_one:
        a(f"ds_write_b32 v{TT+2}, v{V_K}")
        a.label(f"{L}_qgo")
    stamp(6)
    for l in kv_dma():
        a(l)
    a(f"buffer_load_dwordx4 {vr(QA,4)}, v2, {sr(R_WS)}, s68 offen sc1")
    a(f"buffer_load_dwordx4 {vr(QB,4)}, v2, {sr(R_WS)}, s68 offen offset:3072 sc1")
    a(f"buffer_load_dwordx4 {vr(TT,4)}, v2, {sr(R_WS)}, s69 offen sc1")
    for i in range(3):
        for l in kv_dma():
            a(l)
    a("s_waitcnt vmcnt(6)")
    a(f"ds_write_b32 v{V_PW}, v{V_K}")
    a("s_waitcnt vmcnt(3)")
    a(f"v_mfma_f32_32x32x16_bf16 {vr(SA,16)}, {vr(TT,4)}, {vr(QA,4)}, 0")
    a(f"v_mfma_f32_32x32x16_bf16 {vr(SB,16)}, {vr(TT,4)}, {vr(QB,4)}, 0")
    spin(f"{L}_sp0")
    for l in kv_reads(0):
        a(l)
    a(f"v_add_u32 v{V_K}, 1, v{V_K}")
    a("s_nop 3")
    rowmax(SA, 4)
    rowmax(SB, 5)
    crosshalf_max(4, 5, TT + 4, TT + 5)
    off = M_OFFSET if not force_fallback else -200.0
    a(f"v_sub_f32 v{CA}, 0x{f2u(-off):08x}, v4")
    a(f"v_sub_f32 v{CB}, 0x{f2u(-off):08x}, v5")
    a(f"v_mov_b32 v{CA+1}, v{CA}")
    for i in range(2, 16, 2):
        a(f"v_mov_b64 {vr(CA+i,2)}, {vr(CA,2)}")
    a(f"v_mov_b32 v{CB+1}, v{CB}")
    a("s_waitcnt lgkmcnt(0)")
    a(f"v_mfma_f32_32x32x16_bf16 {vr(SA,16)}, {vr(KB[0],4)}, {vr(QA,4)}, {vr(CA,16)}")
    for i in range(2, 16, 2):
        a(f"v_mov_b64 {vr(CB+i,2)}, {vr(CB,2)}")
    for i in range(8, 16, 2):
        a(f"v_mov_b64 {vr(SB+i,2)}, 0")
    a("s_waitcnt vmcnt(2)")
    a(f"ds_write_b32 v{V_PW}, v{V_K}")
    stamp(7)
    a(f"s_branch {L}_mid")

    def phase(X, Y, OX, OY, pv1_V, qk_K, QY, CY, pv0_V, ins=None):
        e = [f"v_exp_f32 v{X+i}, v{X+i}" for i in range(16)]
        c = [f"v_cvt_pk_bf16_f32 v{X+(i if i < 4 else 4+i)}, v{X+2*i}, v{X+2*i+1}" for i in range(8)]
        c7Y = f"v_cvt_pk_bf16_f32 v{Y+11}, v{Y+14}, v{Y+15}"
        pv1Y = f"v_mfma_f32_32x32x16_bf16 {vr(OY,16)}, {vr(pv1_V,4)}, {vr(Y+8,4)}, {vr(OY,16)}"
        qkY = f"v_mfma_f32_32x32x16_bf16 {vr(Y,16)}, {vr(qk_K,4)}, {vr(QY,4)}, {vr(CY,16)}"
        pv0X = f"v_mfma_f32_32x32x16_bf16 {vr(OX,16)}, {vr(pv0_V,4)}, {vr(X,4)}, {vr(OX,16)}"
        seq = [e[0], c7Y, e[1], e[2], pv1Y, e[3], c[0], e[4], e[5], c[1], qkY, e[6], e[7], c[2],
               e[8], e[9], c[3], e[10], e[11], pv0X, c[4], e[12], e[13], c[5], e[14], e[15], c[6]]
        for i, s_ in enumerate(seq):
            for l in (ins or {}).get(i, []):
                if l.endswith(":"):
                    a.label(l[:-1])
                else:
                    a(l)
            a(s_)

    a.raw(".p2align 6")
    a.label(f"{L}_loop")
    d = kv_dma()
    point = {
        1: ["s_add_u32 s75, s75, 4096", "s_cmp_eq_u32 s75, s15", "s_cselect_b32 s75, s14, s75"],
        3: ["s_waitcnt lgkmcnt(0)", f"v_cmp_lt_u32 vcc, v{V_C}, v{V_K}", f"s_cbranch_vccnz {L}_sp1", f"{L}_sp1b:"],
        6: [f"v_add_u32 v{V_AD}, s75, v2", "s_add_u32 s73, s73, 1", "s_cmp_ge_u32 s73, 13", f"s_cbranch_scc1 {L}_tail"] + d[:3] + [f"{L}_tailb:"],
        8: d[3:5] + [f"v_add_u32 v{V_K}, 1, v{V_K}"],
        9: d[5:],
        14: kv_reads(0),
        19: ["s_waitcnt vmcnt(2)", f"ds_write_b32 v{V_PW}, v{V_K}"],
    }
    phase(SA, SB, OA, OB, VB[0] + 4, KB[1], QB, CB, VB[1], point)
    phase(SB, SA, OB, OA, VB[1] + 4, KB[0], QA, CA, VB[1], {10: ["s_waitcnt lgkmcnt(0)"], 24: ["s_cmp_eq_u32 s73, 16"]})
    a(f"s_cbranch_scc1 {L}_done")
    a.label(f"{L}_mid")
    phase(SA, SB, OA, OB, VB[1] + 4, KB[0], QB, CB, VB[0], {14: kv_reads(1)})
    phase(SB, SA, OB, OA, VB[0] + 4, KB[1], QA, CA, VB[0], {10: ["s_waitcnt lgkmcnt(0)"], 20: [f"ds_read_b32 v{V_C}, v{V_PR}"]})
    a(f"s_branch {L}_loop")
    spin(f"{L}_sp1")
    a(f"s_branch {L}_sp1b")
    a.label(f"{L}_tail")
    a("s_waitcnt vmcnt(1)")
    a("s_cmp_eq_u32 s73, 13")
    a(f"s_cbranch_scc1 {L}_tailb")
    a("s_waitcnt vmcnt(0)")
    a(f"s_branch {L}_tailb")
    a.label(f"{L}_done")
    a(f"v_cvt_pk_bf16_f32 v{SB+11}, v{SB+14}, v{SB+15}")
    a("s_mul_i32 s8, s62, 3072")
    a("s_add_u32 s8, s8, 4096")
    a(f"v_mfma_f32_32x32x16_bf16 {vr(OB,16)}, {vr(VB[1]+4,4)}, {vr(SB+8,4)}, {vr(OB,16)}")
    stamp(8)
    a("s_add_u32 s9, s8, s14")
    a(f"v_add_u32 v{TT}, s9, v2")
    a(f"s_sub_u32 s9, {2*L_KV + KV_SZ}, s14")
    a("s_add_u32 s9, s9, s8")
    a(f"v_add_u32 v{TT+1}, s9, v2")
    a(f"v_xor_b32 v{TT+2}, 16, v{V_PW}")
    a.label(f"{L}_fin")
    a(f"v_mov_b32 v{TT+3}, 0x7e800000")
    a("s_mov_b64 s[8:9], -1")
    for r in [OA + i for i in range(9)] + [OB + i for i in range(9)]:
        a(f"v_cmp_lt_f32 vcc, abs(v{r}), v{TT+3}")
        a("s_and_b64 s[8:9], s[8:9], vcc")
    a("s_cmp_eq_u64 s[8:9], -1")
    a("s_cselect_b32 s65, 1, 2")
    a("s_max_u32 s65, s65, s64")
    a(f"v_mov_b32 v{TT+3}, s65")
    a("s_cmp_eq_u32 s63, 0")
    a(f"s_cbranch_scc1 {L}_w0")
    a(f"ds_write_b128 v{TT}, {vr(OA,4)}")
    a(f"ds_write_b128 v{TT}, {vr(OA+4,4)} offset:1024")
    a(f"ds_write_b32 v{TT}, v{OA+8} offset:2048")
    a(f"ds_write_b32 v{V_PW}, v{TT+3} offset:32")
    for i in range(0, 10, 2):
        a(f"v_mov_b64 {vr(SB+i,2)}, {vr(OB+i,2)}")
    a(f"s_branch {L}_w1")
    a.label(f"{L}_w0")
    a(f"ds_write_b128 v{TT}, {vr(OB,4)}")
    a(f"ds_write_b128 v{TT}, {vr(OB+4,4)} offset:1024")
    a(f"ds_write_b32 v{TT}, v{OB+8} offset:2048")
    a(f"ds_write_b32 v{V_PW}, v{TT+3} offset:32")
    for i in range(0, 10, 2):
        a(f"v_mov_b64 {vr(SB+i,2)}, {vr(OA+i,2)}")
    a.label(f"{L}_w1")
    a("s_add_u32 s8, s71, s63")
    a(f"s_mul_i32 s8, s8, {AF_KSTEPS}")
    a("s_add_u32 s8, s8, s60")
    a("s_lshl_b32 s8, s8, 10")
    a(f"s_add_u32 s8, s8, {WS_AF}")
    a(f"s_branch {L}_xw")
    a.label(f"{L}_xs")
    a("s_sleep 2")
    a.label(f"{L}_xw")
    a(f"ds_read_b32 v{SA+9}, v{TT+2} offset:32")
    a(f"ds_read_b128 {vr(SA,4)}, v{TT+1}")
    a(f"ds_read_b128 {vr(SA+4,4)}, v{TT+1} offset:1024")
    a(f"ds_read_b32 v{SA+8}, v{TT+1} offset:2048")
    a("s_waitcnt lgkmcnt(0)")
    a(f"v_cmp_gt_u32 vcc, s64, v{SA+9}")
    a(f"s_cbranch_vccnz {L}_xs")
    a(f"v_readfirstlane_b32 s9, v{SA+9}")
    a("s_max_u32 s9, s9, s65")
    a("s_cmp_lg_u32 s9, s64")
    a(f"s_cbranch_scc1 {L}_fallback")
    a(f"v_add_f32 v{SB+8}, v{SB+8}, v{SA+8}")
    a(f"v_rcp_f32 v{SB+8}, v{SB+8}")
    for i in range(0, 8, 2):
        a(f"v_pk_add_f32 {vr(SB+i,2)}, {vr(SB+i,2)}, {vr(SA+i,2)}")
    for i in range(8):
        a(f"v_mul_f32 v{SB+i}, v{SB+i}, v{SB+8}")
    for i in range(4):
        a(f"v_cvt_pk_bf16_f32 v{SA+i}, v{SB+2*i}, v{SB+2*i+1}")
    a(f"buffer_store_dwordx4 {vr(SA,4)}, v2, {sr(R_WS)}, s8 offen sc1")
    prof_end()
    a("s_barrier")
    a("s_barrier")
    a.label(f"{L}_end")
    a("s_endpgm")
    a.label(f"{L}_fallback")
    a("s_mov_b32 s64, 4")
    a("s_mov_b32 s72, s70")
    a("s_mov_b32 s73, 32")
    a("v_mov_b32 v4, 0xff800000")
    a("v_mov_b32 v5, 0xff800000")
    a.label(f"{L}_fb_loop")
    a(f"buffer_load_dwordx4 {vr(KB[0],4)}, v2, {sr(R_WS)}, s72 offen sc1")
    a("s_add_u32 s72, s72, 3072")
    a("s_waitcnt vmcnt(0)")
    a(f"v_mfma_f32_32x32x16_bf16 {vr(SA,16)}, {vr(KB[0],4)}, {vr(QA,4)}, 0")
    a(f"v_mfma_f32_32x32x16_bf16 {vr(SB,16)}, {vr(KB[0],4)}, {vr(QB,4)}, 0")
    a("s_nop 12")
    for i in range(0, 16, 2):
        a(f"v_max3_f32 v4, v4, v{SA+i}, v{SA+i+1}")
    for i in range(0, 16, 2):
        a(f"v_max3_f32 v5, v5, v{SB+i}, v{SB+i+1}")
    a("s_sub_u32 s73, s73, 1")
    a("s_cmp_lg_u32 s73, 0")
    a(f"s_cbranch_scc1 {L}_fb_loop")
    crosshalf_max(4, 5, TT + 4, TT + 5)
    a(f"v_mov_b32 v{TT+4}, 3")
    a(f"ds_write_b64 v{TT}, v[4:5] offset:2056")
    a(f"ds_write_b32 v{V_PW}, v{TT+4} offset:32")
    a.label(f"{L}_fb_w")
    a(f"ds_read_b32 v{TT+5}, v{TT+2} offset:32")
    a(f"ds_read_b64 {vr(TT+6,2)}, v{TT+1} offset:2056")
    a("s_waitcnt lgkmcnt(0)")
    a(f"v_cmp_gt_u32 vcc, 3, v{TT+5}")
    a(f"s_cbranch_vccnz {L}_fb_w")
    a(f"v_max_f32 v4, v4, v{TT+6}")
    a(f"v_max_f32 v5, v5, v{TT+7}")
    for i in range(16):
        a(f"v_sub_f32 v{CA+i}, 0, v4")
        a(f"v_sub_f32 v{CB+i}, 0, v5")
    for i in range(0, 32, 2):
        a(f"v_mov_b64 {vr(OA+i,2)}, 0")
    a("s_mov_b32 s72, s70")
    a("s_mov_b32 s73, 32")
    a.label(f"{L}_fb_2")
    a(f"buffer_load_dwordx4 {vr(KB[0],4)}, v2, {sr(R_WS)}, s72 offen sc1")
    a("s_mov_b64 exec, s[66:67]")
    a(f"buffer_load_dwordx4 {vr(VB[0],4)}, v2, {sr(R_WS)}, s72 offen offset:1024 sc1")
    a(f"buffer_load_dwordx4 {vr(VB[0]+4,4)}, v2, {sr(R_WS)}, s72 offen offset:1280 sc1")
    a("s_mov_b64 exec, -1")
    a("s_add_u32 s72, s72, 3072")
    a("s_waitcnt vmcnt(0)")
    a(f"v_mfma_f32_32x32x16_bf16 {vr(SA,16)}, {vr(KB[0],4)}, {vr(QA,4)}, {vr(CA,16)}")
    a(f"v_mfma_f32_32x32x16_bf16 {vr(SB,16)}, {vr(KB[0],4)}, {vr(QB,4)}, {vr(CB,16)}")
    a("s_nop 12")
    for i in range(32):
        a(f"v_exp_f32 v{SA+i}, v{SA+i}")
    a("s_nop 0")
    for i in range(16):
        a(f"v_cvt_pk_bf16_f32 v{SA+i}, v{SA+2*i}, v{SA+2*i+1}")
    a("s_nop 1")
    a(f"v_mfma_f32_32x32x16_bf16 {vr(OA,16)}, {vr(VB[0],4)}, {vr(SA,4)}, {vr(OA,16)}")
    a(f"v_mfma_f32_32x32x16_bf16 {vr(OB,16)}, {vr(VB[0],4)}, {vr(SA+8,4)}, {vr(OB,16)}")
    a(f"v_mfma_f32_32x32x16_bf16 {vr(OA,16)}, {vr(VB[0]+4,4)}, {vr(SA+4,4)}, {vr(OA,16)}")
    a(f"v_mfma_f32_32x32x16_bf16 {vr(OB,16)}, {vr(VB[0]+4,4)}, {vr(SA+12,4)}, {vr(OB,16)}")
    a("s_sub_u32 s73, s73, 1")
    a("s_cmp_lg_u32 s73, 0")
    a("s_nop 12")
    a(f"s_cbranch_scc1 {L}_fb_2")
    a(f"s_branch {L}_fin")

    a.label(f"{L}_ffn")
    ffn_start = len(a.lines)
    stamp(1)
    if "noffn" in dbg:
        a("s_barrier")
        a("s_barrier")
        prof_end()
        a("s_endpgm")
    if prio_ffn:
        a(f"s_setprio {prio_ffn}")
    F_AX = 8
    F_AW, F_CW, F_K, F_C, F_PW, F_PR = 12, 13, 14, 15, 16, 17
    FT = 18
    F_B = [28, 48]
    F_ACC = 68
    a(f"v_mov_b32 v{F_AX}, v3")
    for q in range(1, 4):
        a(f"v_xor_b32 v{F_AX+q}, {32*q}, v3")
    a(f"v_lshrrev_b32 v{FT}, 5, v1")
    a(f"v_bfe_u32 v{FT+1}, v1, 2, 2")
    a(f"v_lshl_add_u32 v{FT}, v{FT}, 3, v{FT+1}")
    a(f"v_mul_u32_u24 v{FT}, 352, v{FT}")
    a(f"v_and_b32 v{FT+2}, 3, v1")
    a(f"v_lshl_add_u32 v{FT}, v{FT+2}, 3, v{FT}")
    a(f"v_bfe_u32 v{FT+1}, v1, 4, 1")
    a(f"v_mul_u32_u24 v{FT+1}, {FR_UP}, v{FT+1}")
    a("s_mul_i32 s8, s7, 96")
    a(f"s_add_u32 s8, s8, {L_FR}")
    a(f"v_add3_u32 v{F_AW}, v{FT}, v{FT+1}, s8")
    a(f"v_mov_b32 v{F_CW}, v{F_AW}")

    def reads_f(q):
        b = F_B[q % 2]
        r = [f"ds_read_b128 {vr(b+4*sx,4)}, v{F_AX+q} offset:{4096*sx}" for sx in range(2)]
        for u in range(3):
            for e in range(2):
                r.append(f"ds_read_b64_tr_b16 {vr(b+8+4*u+2*e,2)}, v{F_CW} offset:{4*e*352 + 32*u}")
        return r

    def mfma_f(q):
        b = F_B[q % 2]
        r = []
        for u in range(3):
            for sx in range(2):
                acc = F_ACC + 16 * (2 * u + sx)
                r.append(f"v_mfma_f32_32x32x16_bf16 {vr(acc,16)}, {vr(b+8+4*u,4)}, {vr(b+4*sx,4)}, {vr(acc,16)}")
        return r

    for l in reads_f(0):
        a(l)
    a("s_lshl_b32 s8, s7, 2")
    a(f"s_add_u32 s8, s8, {L_MISC + 64}")
    a(f"v_mov_b32 v{F_PW}, s8")
    a(f"s_mov_b32 s8, {L_MISC + 64}")
    a(f"v_lshl_add_u32 v{F_PR}, v{FT+2}, 2, s8")
    a(f"v_mov_b32 v{F_K}, 1")
    a(f"v_add_u32 v{F_AX}, 8192, v{F_AX}")
    a("s_waitcnt lgkmcnt(0)")
    a(f"ds_write_b32 v{F_PW}, v{F_K}")
    for i in range(0, 96, 2):
        a(f"v_mov_b64 {vr(F_ACC+i,2)}, 0")
    a(f"ds_read_b32 v{F_C}, v{F_PR}")
    a("s_mov_b32 s65, 0")
    a("s_mov_b32 s68, 0")
    a.label(f"{L}_f_loop")
    for q in range(4):
        m = mfma_f(q)
        qn = (q + 1) % 4
        r = reads_f(qn)
        d = dma_f()
        a(f"s_add_u32 s65, s65, {FR_SLOT}")
        a(f"s_cmp_eq_u32 s65, {5 * FR_SLOT}")
        a("s_cselect_b32 s65, 0, s65")
        a(m[0])
        a(f"v_add_u32 v{F_CW}, s65, v{F_AW}")
        a("s_waitcnt lgkmcnt(0)")
        a(f"v_cmp_lt_u32 vcc, v{F_C}, v{F_K}")
        a(f"s_cbranch_vccnz {L}_f_sp{q}")
        a.label(f"{L}_f_spb{q}")
        for l in r[:4]:
            a(l)
        a(m[1])
        for l in r[4:]:
            a(l)
        a(f"v_add_u32 v{F_AX+qn}, 8192, v{F_AX+qn}")
        a(m[2])
        a("s_add_u32 s68, s68, 1")
        a("s_cmp_ge_u32 s68, 28")
        a(f"s_cbranch_scc1 {L}_f_tl{q}")
        for l in d:
            a(l)
        a.label(f"{L}_f_tlb{q}")
        a(m[3])
        a(f"v_add_u32 v{F_K}, 1, v{F_K}")
        a("s_waitcnt vmcnt(9) lgkmcnt(0)")
        a(f"ds_write_b32 v{F_PW}, v{F_K}")
        a(m[4])
        a(m[5])
        a(f"ds_read_b32 v{F_C}, v{F_PR}")
    a("s_cmp_lt_u32 s68, 32")
    a(f"s_cbranch_scc1 {L}_f_loop")
    a(f"s_branch {L}_f_done")
    for q in range(4):
        a.label(f"{L}_f_sp{q}")
        a(f"ds_read_b32 v{F_C}, v{F_PR}")
        a("s_waitcnt lgkmcnt(0)")
        a(f"v_cmp_lt_u32 vcc, v{F_C}, v{F_K}")
        a(f"s_cbranch_vccnz {L}_f_sp{q}")
        a(f"s_branch {L}_f_spb{q}")
        a.label(f"{L}_f_tl{q}")
        a("s_waitcnt vmcnt(0)")
        a(f"s_branch {L}_f_tlb{q}")
    a.label(f"{L}_f_done")
    stamp(2)
    a("s_mul_i32 s61, s7, 12288")
    a(f"s_add_u32 s61, s61, {L_FR}")
    a(f"v_mov_b32 v3, v{F_PR}")
    D_DW = 4
    D_AW = 6
    a("s_and_b32 s68, s2, 7")
    a("s_lshl_b32 s68, s68, 2")
    a("s_bfe_u32 s8, s2, 0x20003")
    a("s_add_u32 s68, s68, s8")
    a("s_lshr_b32 s69, s2, 5")
    a(f"v_lshrrev_b32 v{FT+3}, 3, v1")
    a(f"v_bfe_u32 v{FT+4}, v1, 4, 1")
    a(f"v_lshlrev_b32 v{FT+4}, 2, v{FT+4}")
    a(f"v_and_b32 v{FT+2}, 7, v1")
    a(f"v_xor_b32 v{FT+4}, v{FT+4}, v{FT+2}")
    a(f"v_lshlrev_b32 v{FT+4}, 4, v{FT+4}")
    a(f"v_lshl_add_u32 v{D_DW}, v{FT+3}, 10, v{FT+4}")
    a("s_lshl_b32 s8, s69, 7")
    a(f"v_add_u32 v{D_DW}, s8, v{D_DW}")
    a(f"v_add_u32 v{D_DW+1}, {8192 - 1024}, v{D_DW}")
    a(f"v_lshrrev_b32 v{FT+3}, 5, v1")
    a(f"v_bfe_u32 v{FT+4}, v1, 2, 2")
    a(f"v_lshl_add_u32 v{FT+3}, v{FT+3}, 2, v{FT+4}")
    a(f"v_lshlrev_b32 v{FT+3}, 7, v{FT+3}")
    a(f"v_bfe_u32 v{FT+4}, v1, 3, 1")
    a(f"v_lshl_add_u32 v{FT+3}, v{FT+4}, 6, v{FT+3}")
    a(f"v_bfe_u32 v{FT+4}, v1, 4, 1")
    a(f"v_lshl_add_u32 v{FT+3}, v{FT+4}, 5, v{FT+3}")
    a(f"v_and_b32 v{FT+4}, 3, v1")
    a(f"v_lshl_add_u32 v{FT+3}, v{FT+4}, 3, v{FT+3}")
    a(f"v_add_u32 v{D_AW}, s61, v{FT+3}")
    a(f"v_xor_b32 v{D_AW+1}, 64, v{D_AW}")
    a("s_lshl_b32 s65, s7, 14")
    a(f"v_add_u32 v10, s65, v{FT+3}")
    a(f"v_xor_b32 v11, 64, v10")
    a("s_lshl_b32 s8, s4, 1")
    a(f"s_mul_i32 s8, s8, {AF_KSTEPS}")
    a("s_add_u32 s8, s8, s60")
    a("s_lshl_b32 s8, s8, 10")
    a(f"s_add_u32 s8, s8, {WS_AF + 32*1024}")
    a(f"s_add_u32 s9, s8, {AF_KSTEPS*1024}")
    a(f"s_mov_b32 s10, 0x{f2u(GC1):08x}")
    a(f"v_mov_b32 v{FT+8}, 0x{f2u(GC0):08x}")
    G = F_B[0]
    for u in range(3):
        if u == 2:
            a("s_cmp_eq_u32 s7, 3")
            a(f"s_cbranch_scc1 {L}_f_gd")
        for sx in range(2):
            A = F_ACC + 16 * (2 * u + sx)
            for r in range(8):
                a(f"v_mul_f32 v{G+r}, v{A+r}, v{A+r}")
            for r in range(8):
                a(f"v_fma_f32 v{G+r}, v{G+r}, s10, v{FT+8}")
            for r in range(8):
                a(f"v_mul_f32 v{G+r}, v{G+r}, v{A+r}")
            for r in range(8):
                a(f"v_exp_f32 v{G+r}, v{G+r}")
            for r in range(8):
                a(f"v_mul_f32 v{A+r}, v{A+r}, v{A+8+r}")
            for r in range(8):
                a(f"v_add_f32 v{G+r}, 1.0, v{G+r}")
            for r in range(8):
                a(f"v_rcp_f32 v{G+r}, v{G+r}")
            a("s_nop 0")
            for r in range(8):
                a(f"v_mul_f32 v{A+r}, v{A+r}, v{G+r}")
            for r in range(4):
                a(f"v_cvt_pk_bf16_f32 v{A+8+r}, v{A+2*r}, v{A+2*r+1}")
            a(f"buffer_store_dwordx4 {vr(A+8,4)}, v2, {sr(R_WS)}, s{8+sx} offen offset:{1024*u} sc1")
    a.label(f"{L}_f_gd")
    a("s_lshl_b32 s8, s4, 5")
    a("s_lshl_b32 s9, s5, 2")
    a("s_add_u32 s8, s8, s9")
    a("s_add_u32 s8, s8, s7")
    a("s_lshl_b32 s8, s8, 2")
    a(f"s_add_u32 s8, s8, {WS_FLAG + 4096}")
    a(f"v_mov_b32 v{FT}, 0")
    a(f"v_mov_b32 v{FT+1}, s6")
    a("s_mov_b64 exec, 1")
    a("s_waitcnt vmcnt(0)")
    a(f"buffer_store_dword v{FT+1}, v{FT}, {sr(R_WS)}, s8 offen sc1")
    a("s_mov_b64 exec, -1")
    stamp(3)
    if "nodown" in dbg:
        a("s_barrier")
        a("s_barrier")
        prof_end()
        a("s_endpgm")
    RING = 6
    D_W = [12, 20]
    D_XR = 28
    D_A = 36
    D_ACC = 100
    DT = 164
    a("s_cmp_eq_u32 s7, 3")
    a("s_cselect_b32 s71, 20, 22")
    a("s_lshl_b32 s8, s68, 1")
    a("s_add_u32 s8, s8, s69")
    a("s_and_b32 s8, s8, 7")
    a("s_mul_i32 s8, s8, s71")
    a("s_lshr_b32 s8, s8, 3")
    a("s_mul_i32 s70, s7, 22")
    a("s_lshl_b32 s12, s70, 14")
    a("s_add_u32 s9, s70, s71")
    a("s_lshl_b32 s13, s9, 14")
    a("s_add_u32 s8, s8, s70")
    a("s_lshl_b32 s72, s8, 14")
    a(f"s_mul_i32 s74, s68, {2 * AF_KSTEPS * 1024}")
    a(f"s_add_u32 s74, s74, {WS_AF}")
    a(f"s_add_u32 s14, s74, {32 * 1024}")
    a("s_mov_b32 s73, s72")
    a(f"v_add_u32 v9, {AF_KSTEPS * 1024}, v2")

    def issue_w(slot):
        return [f"s_add_u32 m0, s61, {slot * 2048}", "s_nop 0",
                f"buffer_load_dwordx4 v{D_DW}, {sr(R_WD)}, s72 offen lds",
                f"buffer_load_dwordx4 v{D_DW+1}, {sr(R_WD)}, s72 offen offset:1024 lds",
                "s_add_u32 s72, s72, 16384", "s_cmp_eq_u32 s72, s13", "s_cselect_b32 s72, s12, s72"]

    def issue_a(slot):
        return ["s_lshr_b32 s8, s73, 4", "s_add_u32 s8, s8, s14",
                f"buffer_load_dwordx4 {vr(D_A+8*slot,4)}, v2, {sr(R_WS)}, s8 offen sc1",
                f"buffer_load_dwordx4 {vr(D_A+8*slot+4,4)}, v9, {sr(R_WS)}, s8 offen sc1",
                "s_add_u32 s73, s73, 16384", "s_cmp_eq_u32 s73, s13", "s_cselect_b32 s73, s12, s73"]

    def reads_d(k, ring, aw):
        b = D_W[k % 2]
        return [f"ds_read_b64_tr_b16 {vr(b+4*q+2*e,2)}, v{aw+q} offset:{(k % ring) * 2048 + e * 1024}" for q in range(2) for e in range(2)]

    def mfma_d(k):
        b = D_W[k % 2]
        A = D_A + 8 * k
        return [f"v_mfma_f32_32x32x16_bf16 {vr(D_ACC+16*(2*q+sx),16)}, {vr(b+4*q,4)}, {vr(A+4*sx,4)}, {vr(D_ACC+16*(2*q+sx),16)}"
                for q in range(2) for sx in range(2)]

    a.label(f"{L}_xfree")
    a(f"ds_read_b32 v{DT+1}, v3")
    a("s_waitcnt lgkmcnt(0)")
    a(f"v_cmp_gt_u32 vcc, 33, v{DT+1}")
    a(f"s_cbranch_vccnz {L}_xfree")
    for k in range(RING):
        for l in issue_w(k):
            a(l)
    a("s_lshl_b32 s8, s7, 17")
    a("s_mov_b32 m0, s65")
    a("s_mov_b32 s9, 8")
    a.label(f"{L}_wo")
    a(f"buffer_load_dwordx4 v{D_DW}, {sr(R_WO)}, s8 offen lds")
    a(f"buffer_load_dwordx4 v{D_DW+1}, {sr(R_WO)}, s8 offen offset:1024 lds")
    a("s_add_u32 m0, m0, 2048")
    a("s_add_u32 s8, s8, 16384")
    a("s_sub_u32 s9, s9, 1")
    a("s_cmp_lg_u32 s9, 0")
    a(f"s_cbranch_scc1 {L}_wo")
    a("s_lshl_b32 s8, s68, 1")
    a("s_and_b32 s9, s7, 1")
    a("s_add_u32 s8, s8, s9")
    a("s_lshl_b32 s8, s8, 15")
    a("s_lshl_b32 s9, s69, 7")
    a("s_add_u32 s8, s8, s9")
    a("s_lshr_b32 s9, s7, 1")
    a("s_lshl_b32 s9, s9, 6")
    a("s_add_u32 s75, s8, s9")
    a(f"v_and_b32 v{DT}, 31, v1")
    a(f"v_lshlrev_b32 v{DT}, 10, v{DT}")
    a(f"v_lshrrev_b32 v{DT+1}, 5, v1")
    a(f"v_lshl_add_u32 v8, v{DT+1}, 4, v{DT}")
    a(f"buffer_load_dwordx4 {vr(D_XR,4)}, v8, {sr(R_X)}, s75 offen")
    a(f"buffer_load_dwordx4 {vr(D_XR+4,4)}, v8, {sr(R_X)}, s75 offen offset:32")
    for i in range(0, 64, 2):
        a(f"v_mov_b64 {vr(D_ACC+i,2)}, 0")
    a("s_lshl_b32 s8, s68, 7")
    a(f"s_add_u32 s8, s8, {WS_FLAG + 4096}")
    poll_line(f"{L}_hpoll", "s8", DT)
    stamp(4)
    for k in range(RING):
        for l in issue_a(k):
            a(l)
    for l in reads_d(0, RING, D_AW):
        a(l)
    a("s_waitcnt vmcnt(0)")
    a.label(f"{L}_d_loop")
    for k in range(RING):
        m = mfma_d(k)
        a(f"s_waitcnt vmcnt({4 * (RING - 2)}) lgkmcnt(0)")
        a(m[0])
        for l in reads_d(k + 1, RING, D_AW):
            a(l)
        a(m[1])
        for l in issue_w(k):
            a(l)
        a(m[2])
        a(m[3])
        if k % 2 == 1:
            a("s_sub_u32 s71, s71, 2")
            a("s_cmp_eq_u32 s71, 0")
            a(f"s_cbranch_scc1 {L}_d_done")
        for l in issue_a(k):
            a(l)
    a(f"s_branch {L}_d_loop")
    a.label(f"{L}_d_done")
    stamp(5)
    a("s_lshl_b32 s73, s7, 13")
    a("s_add_u32 s73, s73, s74")
    a("s_add_u32 s74, s73, 4096")
    a(f"s_mov_b32 s22, {SPIN_MAX >> 4}")
    a("s_waitcnt vmcnt(0) lgkmcnt(0)")
    for l in reads_d(0, 8, 10):
        a(l)
    stamp(6)
    a("s_barrier")
    stamp(7)
    a.label(f"{L}_opoll")
    for k in range(8):
        for sx in range(2):
            a(f"buffer_load_dwordx4 {vr(D_A+8*k+4*sx,4)}, v{9 if sx else 2}, {sr(R_WS)}, s{73 + k//4} offen offset:{(k%4)*1024} sc1")
    a(f"v_mov_b32 v{DT}, 0")
    for k in range(8):
        a(f"s_waitcnt vmcnt({14 - 2*k})")
        for i in range(0, 8, 2):
            a(f"v_max3_u32 v{DT}, v{DT}, v{D_A+8*k+i}, v{D_A+8*k+i+1}")
    a(f"v_cmp_eq_u32 vcc, -1, v{DT}")
    a(f"s_cbranch_vccz {L}_ook")
    a("s_sub_u32 s22, s22, 1")
    a("s_cmp_lg_u32 s22, 0")
    a(f"s_cbranch_scc1 {L}_opoll")
    a.label(f"{L}_ook")
    stamp(8)
    for k in range(8):
        m = mfma_d(k)
        a("s_waitcnt lgkmcnt(0)")
        a(m[0])
        if k < 7:
            for l in reads_d(k + 1, 8, 10):
                a(l)
        for l in m[1:]:
            a(l)
    a(f"v_add_u32 v{DT}, s65, v2")
    a("s_lshl_b32 s8, s7, 12")
    a(f"v_add_u32 v{DT+1}, s8, v2")
    a("s_nop 7")
    for t in range(4):
        for g in range(4):
            a(f"ds_write_b128 v{DT}, {vr(D_ACC+16*t+4*g,4)} offset:{t*4096 + g*1024}")
    for i in range(8):
        a(f"v_lshlrev_b32 v{D_W[0]+2*i}, 16, v{D_XR+i}")
        a(f"v_and_b32 v{D_W[0]+2*i+1}, 0xffff0000, v{D_XR+i}")
    a("s_waitcnt lgkmcnt(0)")
    a("s_barrier")
    for p in range(4):
        for g in range(4):
            a(f"ds_read_b128 {vr(D_A+16*p+4*g,4)}, v{DT+1} offset:{p*16384 + g*1024}")
    R = D_A
    for p in range(1, 4):
        a(f"s_waitcnt lgkmcnt({12 - 4*p})")
        for i in range(0, 16, 2):
            a(f"v_pk_add_f32 {vr(R+i,2)}, {vr(R+i,2)}, {vr(R+16*p+i,2)}")
    a("s_nop 1")
    for g2 in range(2):
        for i in range(4):
            a(f"v_permlane32_swap_b32 v{R+8*g2+i}, v{R+8*g2+4+i}")
    a("s_nop 1")
    for i in range(0, 16, 2):
        a(f"v_pk_add_f32 {vr(R+i,2)}, {vr(R+i,2)}, {vr(D_W[0]+i,2)}")
    for i in range(8):
        a(f"v_cvt_pk_bf16_f32 v{D_XR+i}, v{R+2*i}, v{R+2*i+1}")
    a(f"buffer_store_dwordx4 {vr(D_XR,4)}, v8, {sr(R_OUT)}, s75 offen")
    a(f"buffer_store_dwordx4 {vr(D_XR+4,4)}, v8, {sr(R_OUT)}, s75 offen offset:32")
    prof_end()
    a("s_endpgm")
    head, tail = a.lines[:ffn_start], a.lines[ffn_start:]
    if "f_nomfma" in dbg:
        tail = [l for l in tail if "v_mfma" not in l]
    if "f_nodma" in dbg:
        tail = [l for l in tail if not l.rstrip().endswith(" lds")]
    if "f_nolds" in dbg:
        tail = [l for l in tail if "ds_read" not in l]
    if "f_nogelu" in dbg:
        tail = [l for l in tail if not any(k in l for k in ("v_exp", "v_rcp", "v_mul_f32", "v_fma_f32", "v_add_f32"))]
    if "nosc1" in dbg:
        head = [l.replace(" sc1", "") if "load_dwordx4" in l else l for l in head]
    ia = head.index(f"{L}_a_nopois:"); ib = head.index(f"{L}_a_nost:")
    mid = head[ia:ib]
    if "a_nomfma" in dbg:
        mid = [l for l in mid if "v_mfma" not in l]
    if "a_no16" in dbg:
        mid = [l for l in mid if "16x16x32" not in l]
    if "a_nostat" in dbg:
        mid = [l for l in mid if not any(k in l for k in ("v_fmac", "v_lshlrev_b32 v4", "0xffff0000"))]
    if "a_nolds" in dbg:
        mid = [l for l in mid if "ds_read" not in l]
    if "a_nodma" in dbg:
        mid = [l for l in mid if not l.rstrip().endswith(" lds")]
    if "a_nobar" in dbg:
        mid = [l for l in mid if "s_barrier" not in l]
    head = head[:ia] + mid + head[ib:]
    a.lines = head + tail
    return a.text(), kernel_desc(label, 168), (label, 256, 768, LDS_BYTES)


def build(list_form=False, **kw):
    import os
    ref = "cdna_kernels/" + NAME + ".s.ref"
    HEADER = open(ref).read().split("; Override launch geometry")[0] if os.path.exists(ref) else "; dev"
    b, d, l = gen(**kw)
    out = [HEADER.rstrip(), f"; @launch " + (f"kernel={l[0]} " if list_form else "") + f"grid=({l[1]},1,1) block=({l[2]},1,1) lds={l[3]}", '.amdgcn_target "amdgcn-amd-amdhsa--gfx950"', b,
           '.section .rodata,"a"', ".p2align 6", d]
    return "\n".join(out)


if __name__ == "__main__":
    import sys
    open(sys.argv[1] if len(sys.argv) > 1 else "m0.s", "w").write(build())
    open("m_prof.s", "w").write(build(prof=True))
```

```python
from common import *
import struct

def f2u(f):
    return struct.unpack("<I", struct.pack("<f", f))[0]

CQ = 0.25 * 1.4426950408889634
GC0 = -2.0 * 1.4426950408889634 * 0.7978845608028654
GC1 = GC0 * 0.044715
M_OFFSET = 96.0

WS_FLAG = 16 << 20
WS_SIZE = 17 << 20
L_X = 0
L_RING = 65536
L_KV = 122880
KV_SZ = 20480
L_MISC = 65536
L_FR = 65664
FR_SLOT, FR_UP = 11392, 5760
LDS_BYTES = 163840
R_X, R_WQ, R_WS, R_WG, R_WU, R_WD, R_WO, R_OUT, R_DBG = 24, 28, 32, 36, 40, 44, 48, 52, 56
def sr(r):
    return f"s[{r}:{r+3}]"
SPIN_MAX = 1 << 18


def gen(label=NAME + "_kernel", prof=False, force_fallback=False, prio_ffn=2, base0=(1,1,1,0), base1=(1,1,1,1), hi=3, dbg="", poll_sleep=1,
        pro=3, fsched=(0, 0, 0, 0, 0, 2, 2, 1), fstride=128, early=True, hsleep=4, RING=6, thr=4, pf=4, pf2=0, othr=16, osleep=2, ones2=True, hyb=0,
        POS=(2, 7, 12), xbar=True, skip3=True, wo_early=True):
    a = Asm()
    kernel_head(a, label)
    L = "L"
    TM = "s_memrealtime" if prof == 2 else "s_memtime"
    def stamp(i):
        if prof:
            a(f"{TM} s[{76+2*i}:{77+2*i}]")
    def prof_end():
        if not prof:
            return
        a("s_waitcnt vmcnt(0)")
        a(f"{TM} s[94:95]")
        a("s_memrealtime s[98:99]")
        a("s_waitcnt lgkmcnt(0)")
        for i in range(1, 10):
            a(f"s_sub_u32 s{76+2*i}, s{76+2*i}, s76")
        for i in range(10):
            a(f"v_mov_b32 v{8+i}, s{76+2*i}")
        a("v_mov_b32 v18, s96")
        a("v_mov_b32 v19, s98")
        a("s_mul_i32 s100, s2, 12")
        a("s_add_u32 s100, s100, s3")
        a("s_lshl_b32 s100, s100, 6")
        a(f"s_add_u32 s100, s100, {WS_PROF}")
        a(f"s_mov_b32 s{R_WS+2}, 0x4000000")
        a("v_mov_b32 v20, 0")
        a(f"buffer_store_dwordx4 v[8:11], v20, {sr(R_WS)}, s100 offen")
        a(f"buffer_store_dwordx4 v[12:15], v20, {sr(R_WS)}, s100 offen offset:16")
        a(f"buffer_store_dwordx4 v[16:19], v20, {sr(R_WS)}, s100 offen offset:32")

    XR, XF, XS = 8, 40, 104
    A_B = [8, 48]
    A_ACC = 112
    A_X, A_W, A_XW, A_XG, A_PV, A_PD = 136, 138, 140, 141, 142, 143
    A_P = 152
    E_Z = 6
    T = 144
    F_D = 164
    if prof:
        a(f"{TM} s[76:77]")
        a("s_memrealtime s[96:97]")
    a(f"s_load_dwordx2 s[{R_X}:{R_X+1}], s[0:1], {KA_X}")
    a(f"s_load_dwordx2 s[{R_WQ}:{R_WQ+1}], s[0:1], {KA_WQKV}")
    for r, ka in ((R_WS, KA_WS), (R_DBG, KA_DBG)):
        a(f"s_load_dwordx2 s[{r}:{r+1}], s[0:1], {ka}")
    a("s_cmp_ge_u32 s2, 256")
    a(f"s_cbranch_scc1 {L}_end")
    a(f"v_lshrrev_b32 v{T}, 6, v0")
    a("v_and_b32 v1, 63, v0")
    a(f"v_readfirstlane_b32 s3, v{T}")
    a("s_and_b32 s4, s2, 3")
    a("s_lshl_b32 s4, s4, 3")
    a("s_bfe_u32 s8, s2, 0x30003")
    a("s_add_u32 s4, s4, s8")
    a("s_and_b32 s5, s2, 4")
    a("s_lshr_b32 s8, s2, 6")
    a("s_add_u32 s5, s5, s8")
    a("s_lshl_b32 s8, s5, 1")
    a("s_add_u32 s10, s4, s8")
    a("s_and_b32 s10, s10, 7")
    for r, n in ((R_X, 2048*512*2), (R_WQ, 512*1536*2), (R_WS, WS_SIZE), (R_DBG, 256)):
        a(f"s_mov_b32 s{r+2}, {n}")
        a(f"s_mov_b32 s{r+3}, 0x20000")
    a("v_lshlrev_b32 v2, 4, v1")
    a(f"v_mov_b32 v{E_Z}, 0")
    a("s_and_b32 s17, s3, 1")
    a("s_cmp_ge_u32 s3, 8")
    a(f"s_cbranch_scc1 {L}_ffn")
    a(f"v_lshrrev_b32 v{T}, 3, v0")
    a(f"v_and_b32 v{T+1}, 7, v0")
    a(f"v_lshlrev_b32 v{T+2}, 4, v{T+1}")
    a(f"v_lshl_add_u32 v{A_XG}, v{T}, 10, v{T+2}")
    a("s_lshl_b32 s12, s4, 16")
    a("s_lshl_b32 s11, s10, 7")
    a("s_waitcnt lgkmcnt(0)")
    for i in range(8):
        a("s_add_u32 s8, s11, s12")
        if i < 7:
            a("s_add_u32 s11, s11, 128")
        a(f"buffer_load_dwordx4 {vr(XR+4*i,4)}, v{A_XG}, {sr(R_X)}, s8 offen")
        if i < 7:
            a("s_and_b32 s11, s11, 1023")
    if xbar:
        a("s_barrier")
    a("s_lshr_b32 s18, s3, 1")
    a("s_lshl_b32 s19, s5, 2")
    a("s_add_u32 s19, s19, s18")
    a("s_lshl_b32 s20, s4, 1")
    a("s_add_u32 s20, s20, s17")
    a(f"s_mul_i32 s8, s20, {AF_KSTEPS}")
    a("s_add_u32 s8, s8, s19")
    a("s_lshl_b32 s8, s8, 10")
    a(f"s_add_u32 s8, s8, {WS_AF}")
    a(f"v_mov_b64 {vr(A_P,2)}, -1")
    a(f"v_mov_b64 {vr(A_P+2,2)}, -1")
    a(f"s_mul_i32 s21, s19, {QKV_HEAD}")
    a(f"buffer_store_dwordx4 {vr(A_P,4)}, v2, {sr(R_WS)}, s8 offen sc1")
    a(f"s_mul_i32 s20, s20, {QKV_TILE}")
    a("s_add_u32 s21, s21, s20")
    a(f"v_bfe_u32 v{T+2}, v0, 4, 3")
    a(f"v_xor_b32 v{T+2}, v{T+2}, v{T+1}")
    a(f"v_lshlrev_b32 v{T+2}, 4, v{T+2}")
    a(f"v_lshl_add_u32 v{A_XW}, v{T}, 7, v{T+2}")
    a(f"v_and_b32 v{T}, 15, v1")
    a(f"v_lshrrev_b32 v{T+1}, 4, v1")
    a(f"v_bfe_u32 v{T+2}, v1, 1, 3")
    a(f"v_xor_b32 v{T+2}, v{T+2}, v{T+1}")
    a(f"v_lshlrev_b32 v{T+2}, 4, v{T+2}")
    a(f"v_lshl_add_u32 v{T+2}, v{T}, 7, v{T+2}")
    a("s_lshl_b32 s8, s17, 12")
    a(f"v_add_u32 v{A_X}, s8, v{T+2}")
    a(f"v_xor_b32 v{A_X+1}, 64, v{A_X}")
    a(f"v_mul_u32_u24 v{T+2}, 3072, v{T+1}")
    a(f"v_bfe_u32 v{T+3}, v1, 2, 2")
    a(f"v_lshl_add_u32 v{T+2}, v{T+3}, 7, v{T+2}")
    a(f"v_bfe_u32 v{T+3}, v1, 3, 2")
    a(f"v_xor_b32 v{T+3}, s18, v{T+3}")
    a(f"v_lshl_add_u32 v{T+2}, v{T+3}, 5, v{T+2}")
    a(f"v_and_b32 v{T+3}, 3, v1")
    a(f"v_lshl_add_u32 v{T+2}, v{T+3}, 3, v{T+2}")
    a(f"v_add_u32 v{A_W}, {L_RING}, v{T+2}")
    a(f"v_add_u32 v{A_W+1}, {L_RING + 49152}, v{T+2}")
    a("s_bfe_u32 s23, s2, 0x30002")
    a(f"s_mul_i32 s23, s23, {32 * fstride}")
    a(f"s_add_u32 s23, s23, {WS_FLAG}")
    a(f"v_and_b32 v{A_PV}, 31, v1")
    a(f"v_mul_u32_u24 v{A_PV}, {fstride}, v{A_PV}")
    a(f"v_mov_b32 v{A_PD}, 0")
    for i in range(0, 8, 2):
        a(f"v_mov_b64 {vr(XS+i,2)}, 0")
    for i in range(0, 24, 2):
        a(f"v_mov_b64 {vr(A_ACC+i,2)}, 0")
    a.label(f"{L}_a_nopois")
    for i in range(8):
        a(f"s_waitcnt vmcnt({8 - i})")
        for d in range(4):
            a(f"v_lshlrev_b32 v{XF+8*i+2*d}, 16, v{XR+4*i+d}")
            a(f"v_and_b32 v{XF+8*i+2*d+1}, 0xffff0000, v{XR+4*i+d}")
        for d in range(4):
            x = vr(XF+8*i+2*d, 2)
            a(f"v_pk_add_f32 {vr(XS+4*(d&1),2)}, {vr(XS+4*(d&1),2)}, {x}")
            a(f"v_pk_fma_f32 {vr(XS+2+4*(d&1),2)}, {x}, {x}, {vr(XS+2+4*(d&1),2)}")
    stamp(1)
    a(f"v_pk_add_f32 {vr(XS,2)}, {vr(XS,2)}, {vr(XS+4,2)}")
    a(f"v_pk_add_f32 {vr(XS+2,2)}, {vr(XS+2,2)}, {vr(XS+6,2)}")
    a(f"v_add_f32 v{XS}, v{XS}, v{XS+1}")
    a(f"v_add_f32 v{XS+2}, v{XS+2}, v{XS+3}")
    for m_ in ("quad_perm:[1,0,3,2]", "quad_perm:[2,3,0,1]", "row_half_mirror"):
        a("s_nop 0")
        a(f"v_add_f32_dpp v{XS}, v{XS}, v{XS} {m_} row_mask:0xf bank_mask:0xf")
        a(f"v_add_f32_dpp v{XS+2}, v{XS+2}, v{XS+2} {m_} row_mask:0xf bank_mask:0xf")
    a(f"v_mul_f32 v{XS}, 0xbb000000, v{XS}")
    a(f"v_mul_f32 v{XS+2}, 0x3b000000, v{XS+2}")
    a(f"v_fma_f32 v{XS+2}, -v{XS}, v{XS}, v{XS+2}")
    a(f"v_max_f32 v{XS+2}, 0, v{XS+2}")
    a(f"v_add_f32 v{XS+2}, 0x{f2u(1e-5):08x}, v{XS+2}")
    a(f"v_rsq_f32 v{XS+2}, v{XS+2}")
    a("s_nop 0")
    a(f"v_mul_f32 v{XS}, v{XS}, v{XS+2}")
    for i in range(8):
        for d in range(4):
            x = vr(XF+8*i+2*d, 2)
            a(f"v_pk_fma_f32 {x}, {x}, {vr(XS+2,2)}, {vr(XS,2)} op_sel_hi:[1,0,0]")
        for d in range(4):
            a(f"v_cvt_pk_bf16_f32 v{XR+4*i+d}, v{XF+8*i+2*d}, v{XF+8*i+2*d+1}")
        a(f"ds_write_b128 v{A_XW}, {vr(XR+4*i,4)} offset:{8192*i}")

    def reads_a(c):
        b = A_B[c % 2]
        r = []
        for q in range(2):
            for t in range(2):
                r.append(f"ds_read_b128 {vr(b+8*q+4*t,4)}, v{A_X+q} offset:{8192*c + 2048*t}")
            for g in range(3):
                for e in range(2):
                    r.append(f"ds_read_b64_tr_b16 {vr(b+16+12*q+4*g+2*e,2)}, v{A_W+(c>>1&1)} offset:{24576*(c&1) + 12288*q + 1024*g + 512*e}")
        return r

    def mm_a(c):
        b = A_B[c % 2]
        r = []
        for q in range(2):
            for g in range(3):
                for t in range(2):
                    x, w, acc = vr(b+8*q+4*t, 4), vr(b+16+12*q+4*g, 4), vr(A_ACC+8*g+4*t, 4)
                    r.append(f"v_mfma_f32_16x16x32_bf16 {acc}, {x}, {w}, {acc}" if g == 2 else f"v_mfma_f32_16x16x32_bf16 {acc}, {w}, {x}, {acc}")
        return r

    a("s_waitcnt lgkmcnt(0)")
    a("s_barrier")
    stamp(4)
    for l in reads_a(0):
        a(l)
    for c in range(1, 8):
        m, r = mm_a(c - 1), reads_a(c)
        a("s_waitcnt lgkmcnt(0)")
        a(m[0])
        a(m[1])
        a("s_barrier")
        for i in range(8):
            a(r[2*i])
            a(r[2*i+1])
            a(m[2+i])
        a(m[10])
        a(m[11])
    a(f"buffer_load_dword v7, v{E_Z}, {sr(R_DBG)}, 0 offen sc1")
    m = mm_a(7)
    a("s_waitcnt lgkmcnt(8)")
    for l in m[:6]:
        a(l)
    a("s_waitcnt lgkmcnt(0)")
    stamp(2)
    for l in m[8:] + m[6:8]:
        a(l)
    a.label(f"{L}_a_nost")
    a(f"s_mov_b32 s8, 0x{f2u(CQ):08x}")
    a("s_mov_b32 s9, s8")
    a("s_nop 1")
    for n, g in enumerate((1, 2, 0)):
        C, P = A_ACC + 8 * g, A_P + 4 * n
        if g == 0:
            for i in range(0, 8, 2):
                a(f"v_pk_mul_f32 {vr(C+i,2)}, {vr(C+i,2)}, s[8:9]")
        for i in range(4):
            a(f"v_cvt_pk_bf16_f32 v{P+i}, v{C+2*i}, v{C+2*i+1}")
        a("s_nop 0")
        a(f"v_permlane16_swap_b32 v{P}, v{P+2}")
        a(f"v_permlane16_swap_b32 v{P+1}, v{P+3}")
        a("s_nop 0")
        a(f"buffer_store_dwordx4 {vr(P,4)}, v2, {sr(R_WS)}, s21 offen offset:{1024*n} sc1")
    if early:
        a("s_cmp_lg_u32 s3, 7")
        a(f"s_cbranch_scc1 {L}_att")
        a(f"buffer_load_dword v{A_PD}, v{A_PV}, {sr(R_WS)}, s23 offen sc1")

    def dma_f():
        return ["s_mov_b32 m0, s64", f"s_add_u32 s64, s64, {FR_SLOT}",
                f"buffer_load_dwordx4 v{F_D}, {sr(R_WG)}, s63 offen lds",
                f"buffer_load_dwordx4 v{F_D+1}, {sr(R_WG)}, s63 offen offset:1024 lds",
                "s_mov_b64 exec, s[66:67]",
                f"buffer_load_dwordx4 v{F_D+2}, {sr(R_WG)}, s63 offen offset:2048 lds",
                "s_mov_b64 exec, -1", f"s_add_u32 s63, s63, {16*2752}",
                f"s_cmp_eq_u32 s63, {512*2752}", "s_cselect_b32 s63, 0, s63",
                "s_cmp_eq_u32 s64, s62", "s_cselect_b32 s64, s61, s64"]

    def get_tag(name, v=7):
        a(f"v_readfirstlane_b32 s6, v{v}")
        a(f"s_mov_b32 s22, {SPIN_MAX}")
        a.label(name)
        a("s_cmp_lg_u32 s6, 0")
        a(f"s_cbranch_scc1 {name}ok")
        a(f"buffer_load_dword v{v}, off, {sr(R_DBG)}, 0 sc1")
        a("s_sub_u32 s22, s22, 1")
        a("s_waitcnt vmcnt(0)")
        a(f"v_readfirstlane_b32 s6, v{v}")
        a("s_cmp_lg_u32 s22, 0")
        a(f"s_cbranch_scc1 {name}")
        a.label(f"{name}ok")

    def poll_line(name, sbase, vtmp, n=32, poll_sleep=poll_sleep):
        a(f"v_and_b32 v{vtmp}, {n-1}, v1")
        a(f"v_mul_u32_u24 v{vtmp}, {fstride}, v{vtmp}")
        a(f"s_mov_b32 s22, {SPIN_MAX}")
        a.label(f"{name}")
        a(f"buffer_load_dword v{vtmp+1}, v{vtmp}, {sr(R_WS)}, {sbase} offen sc1")
        a("s_sub_u32 s22, s22, 1")
        a("s_waitcnt vmcnt(0)")
        a(f"v_cmp_ne_u32 vcc, s6, v{vtmp+1}")
        a(f"s_cbranch_vccz {name}_ok")
        a(f"s_sleep {poll_sleep}")
        a("s_cmp_lg_u32 s22, 0")
        a(f"s_cbranch_scc1 {name}")
        a.label(f"{name}_ok")

    a.label(f"{L}_att")
    SA, SB, CA, CB, OA, OB, QA, QB = 8, 24, 40, 56, 72, 88, 104, 108
    KB = [112, 116]
    VB = [120, 128]
    V_AD, V_K, V_C, V_PW, V_PR, V_IX = 136, 137, 138, 139, 140, 141

    def pv(O, V, P):
        return f"v_smfmac_f32_32x32x32_bf16 {vr(O,16)}, {vr(V,4)}, {vr(P,8)}, v{V_IX}"

    TT = 144
    stamp(3)
    a("s_and_b32 s60, s2, 31")
    a("s_lshr_b32 s61, s2, 5")
    a("s_and_b32 s62, s3, 3")
    a("s_lshr_b32 s63, s3, 2")
    a("s_mov_b32 s64, 1")
    a("s_mov_b32 s66, 0x0000ffff")
    a("s_mov_b32 s67, 0x0000ffff")
    a("s_lshl_b32 s71, s61, 3")
    a("s_lshl_b32 s8, s62, 1")
    a("s_add_u32 s71, s71, s8")
    a(f"s_mul_i32 s69, s60, {QKV_HEAD}")
    a(f"s_mul_i32 s8, s71, {QKV_TILE}")
    a("s_add_u32 s68, s69, s8")
    a("s_add_u32 s68, s68, 2048")
    a(f"s_mul_i32 s8, s63, {32 * QKV_TILE}")
    a("s_add_u32 s70, s69, s8")
    a(f"s_mul_i32 s9, s61, {4 * QKV_TILE}")
    a("s_add_u32 s69, s69, s9")
    a("s_lshr_b32 s8, s62, 1")
    a(f"s_mul_i32 s8, s8, {QKV_TILE}")
    a("s_and_b32 s10, s62, 1")
    a("s_lshl_b32 s10, s10, 10")
    a("s_add_u32 s8, s8, s10")
    a("s_add_u32 s12, s70, s8")
    a(f"s_add_u32 s13, s12, {32 * QKV_TILE}")
    a("s_add_u32 s72, s12, s9")
    a(f"s_mul_i32 s14, s63, {KV_SZ}")
    a(f"s_add_u32 s14, s14, {L_KV}")
    a(f"s_add_u32 s15, s14, {KV_SZ}")
    a("s_mov_b32 s75, s14")
    a("s_lshl_b32 s8, s62, 10")
    a("s_add_u32 s16, s14, s8")
    a("s_add_u32 s17, s15, s8")
    a("s_mov_b32 s74, s16")
    a("s_lshl_b32 s8, s3, 2")
    a(f"s_add_u32 s8, s8, {L_MISC}")
    a(f"v_mov_b32 v{V_PW}, s8")
    a("s_and_b32 s8, s8, 0xfffffff0")
    a(f"v_and_b32 v{V_PR}, 3, v1")
    a(f"v_lshl_add_u32 v{V_PR}, v{V_PR}, 2, s8")
    a(f"v_mov_b32 v{V_K}, 1")
    a("s_mov_b32 s73, 0")

    def att_init():
        a(f"v_mov_b32 v{V_IX}, 0xdddddddd")
        if ones2:
            a(f"v_and_b32 v{VB[0]}, 27, v1")
            a(f"v_cmp_eq_u32 vcc, 16, v{VB[0]}")
            a(f"v_mov_b32 v{VB[0]+1}, 0x3f803f80")
            a(f"v_cndmask_b32 v{VB[0]}, 0, v{VB[0]+1}, vcc")
            a(f"v_mov_b32 v{VB[0]+1}, v{VB[0]}")
        else:
            a(f"v_mov_b32 v{VB[0]}, 0x3f803f80")
            a(f"v_mov_b32 v{VB[0]+1}, 0x3f803f80")
        for i in range(2, 16, 2):
            a(f"v_mov_b64 {vr(VB[0]+i,2)}, {vr(VB[0],2)}")
        for i in range(0, 32, 2):
            a(f"v_mov_b64 {vr(OA+i,2)}, 0")

    def kv_dma():
        return ["s_mov_b32 m0, s74", "s_add_u32 s74, s74, 4096",
                f"buffer_load_dwordx4 v2, {sr(R_WS)}, s72 offen sc1 lds",
                "s_cmp_eq_u32 s74, s17", "s_cselect_b32 s74, s16, s74",
                f"s_add_u32 s72, s72, {2 * QKV_TILE}", "s_cmp_eq_u32 s72, s13", "s_cselect_b32 s72, s12, s72"]

    def kv_reads(p):
        return [f"ds_read_b128 {vr(KB[p],4)}, v{V_AD} offset:{2048*p}", "s_mov_b64 exec, s[66:67]",
                f"ds_read_b128 {vr(VB[p],4)}, v{V_AD} offset:{2048*p+1024}",
                f"ds_read_b128 {vr(VB[p]+4,4)}, v{V_AD} offset:{2048*p+1280}", "s_mov_b64 exec, -1"]

    def spin(name):
        a.label(f"{name}")
        a(f"ds_read_b32 v{V_C}, v{V_PR}")
        a("s_waitcnt lgkmcnt(0)")
        a(f"v_cmp_lt_u32 vcc, v{V_C}, v{V_K}")
        a(f"s_cbranch_vccnz {name}")

    def rowmax(S, dst):
        a(f"v_max3_f32 v{dst}, v{S}, v{S+1}, v{S+2}")
        for i in range(3, 15, 2):
            a(f"v_max3_f32 v{dst}, v{dst}, v{S+i}, v{S+i+1}")
        a(f"v_max_f32 v{dst}, v{dst}, v{S+15}")

    def crosshalf_max(r0, r1, t0, t1):
        a(f"v_mov_b32 v{t0}, v{r0}")
        a(f"v_mov_b32 v{t1}, v{r1}")
        a("s_nop 1")
        a(f"v_permlane32_swap_b32 v{t0}, v{r0}")
        a(f"v_permlane32_swap_b32 v{t1}, v{r1}")
        a("s_nop 1")
        a(f"v_max_f32 v{r0}, v{r0}, v{t0}")
        a(f"v_max_f32 v{r1}, v{r1}, v{t1}")

    att_init()
    a(f"v_add_u32 v{V_AD}, s75, v2")
    a(f"v_mov_b32 v{TT+2}, {L_MISC + 96}")
    a("s_lshl_b32 s8, s5, 5")
    a("s_add_u32 s8, s8, s4")
    a(f"s_mul_i32 s8, s8, {fstride}")
    a(f"s_add_u32 s8, s8, {WS_FLAG}")
    a("s_waitcnt vmcnt(0)")
    stamp(5)
    get_tag(f"{L}_tag")
    a(f"v_cmp_ne_u32 vcc, s6, v{A_PD}")
    a("s_mov_b64 exec, 1")
    a(f"s_cbranch_vccnz {L}_q1")
    a(f"ds_write_b32 v{TT+2}, v{V_K} offset:8")
    a.label(f"{L}_q1")
    a(f"ds_add_rtn_u32 v{TT+3}, v{TT+2}, v{V_K} offset:4")
    a(f"ds_read_b32 v{TT+4}, v{TT+2} offset:8")
    a("s_waitcnt lgkmcnt(0)")
    a(f"v_cmp_eq_u32 vcc, 7, v{TT+3}")
    a(f"s_cbranch_vccnz {L}_qlast")
    a.label(f"{L}_qw")
    a("s_sleep 1")
    a(f"ds_read_b32 v{TT+3}, v{TT+2}")
    a("s_waitcnt lgkmcnt(0)")
    a(f"v_cmp_eq_u32 vcc, 0, v{TT+3}")
    a(f"s_cbranch_vccnz {L}_qw")
    a("s_mov_b64 exec, -1")
    a(f"s_branch {L}_qgo")
    a.label(f"{L}_qlast")
    a(f"buffer_store_dword v7, off, {sr(R_WS)}, s8 sc1")
    a(f"v_cmp_eq_u32 vcc, 0, v{TT+4}")
    a("s_mov_b64 exec, -1")
    a(f"s_cbranch_vccz {L}_qpoll_ok")
    poll_line(f"{L}_qpoll", "s23", TT)
    a(f"ds_write_b32 v{TT+2}, v{V_K}")
    a.label(f"{L}_qgo")
    stamp(6)
    for l in kv_dma():
        a(l)
    a(f"buffer_load_dwordx4 {vr(QA,4)}, v2, {sr(R_WS)}, s68 offen sc1")
    a(f"buffer_load_dwordx4 {vr(QB,4)}, v2, {sr(R_WS)}, s68 offen offset:3072 sc1")
    a(f"buffer_load_dwordx4 {vr(TT,4)}, v2, {sr(R_WS)}, s69 offen sc1")
    for i in range(3):
        for l in kv_dma():
            a(l)
    a("s_waitcnt vmcnt(6)")
    a(f"ds_write_b32 v{V_PW}, v{V_K}")
    a("s_waitcnt vmcnt(3)")
    a(f"v_mfma_f32_32x32x16_bf16 {vr(SA,16)}, {vr(TT,4)}, {vr(QA,4)}, 0")
    a(f"v_mfma_f32_32x32x16_bf16 {vr(SB,16)}, {vr(TT,4)}, {vr(QB,4)}, 0")
    spin(f"{L}_sp0")
    for l in kv_reads(0):
        a(l)
    a(f"v_add_u32 v{V_K}, 1, v{V_K}")
    a("s_nop 3")
    rowmax(SA, 4)
    rowmax(SB, 5)
    crosshalf_max(4, 5, TT + 4, TT + 5)
    off = M_OFFSET if not force_fallback else -200.0
    a(f"v_sub_f32 v{CA}, 0x{f2u(-off):08x}, v4")
    a(f"v_sub_f32 v{CB}, 0x{f2u(-off):08x}, v5")
    a(f"v_mov_b32 v{CA+1}, v{CA}")
    for i in range(2, 16, 2):
        a(f"v_mov_b64 {vr(CA+i,2)}, {vr(CA,2)}")
    a(f"v_mov_b32 v{CB+1}, v{CB}")
    a("s_waitcnt lgkmcnt(0)")
    a(f"v_mfma_f32_32x32x16_bf16 {vr(SA,16)}, {vr(KB[0],4)}, {vr(QA,4)}, {vr(CA,16)}")
    for i in range(2, 16, 2):
        a(f"v_mov_b64 {vr(CB+i,2)}, {vr(CB,2)}")
    for i in range(8, 16, 2):
        a(f"v_mov_b64 {vr(SB+i,2)}, 0")
    a("s_waitcnt vmcnt(2)")
    a(f"ds_write_b32 v{V_PW}, v{V_K}")
    stamp(7)
    a("s_setprio 1")
    a("s_cmp_eq_u32 s63, 0")
    a(f"s_cbranch_scc1 {L}_mid0")
    a(f"s_branch {L}_mid1")

    def phase(X, Y, OX, OY, pv1_V, qk_K, QY, CY, pv0_V, ins=None, lo=None, prev=None):
        qkY = f"v_mfma_f32_32x32x16_bf16 {vr(Y,16)}, {vr(qk_K,4)}, {vr(QY,4)}, {vr(CY,16)}"
        m = dict(zip(POS, (pv(OY, pv1_V, Y + 8), qkY, pv(OX, pv0_V, X))))
        assert POS[0] >= 2 and POS[2] >= 10 and 16 - POS[1] + 1 + (3 if hi is not None else 0) >= 12
        if hi is None and lo != prev:
            a(f"s_setprio {lo}")
        for i in range(16):
            for l in (ins or {}).get(i, []):
                if l.endswith(":"):
                    a.label(l[:-1])
                else:
                    a(l)
            if i in m:
                if hi is not None:
                    a(f"s_setprio {hi}")
                a(m[i])
                if hi is not None:
                    a(f"s_setprio {lo}")
            a(f"v_exp_f32 v{X+i}, v{X+i}")

    a.label(f"{L}_loop")
    for g, B in enumerate((base0, base1)):
        a.raw(".p2align 6")
        a.label(f"{L}_loop{g}")
        d = kv_dma()
        point = {
            1: ["s_add_u32 s75, s75, 4096", "s_cmp_eq_u32 s75, s15", "s_cselect_b32 s75, s14, s75"],
            2: ["s_waitcnt lgkmcnt(0)", f"v_cmp_lt_u32 vcc, v{V_C}, v{V_K}", f"s_cbranch_vccnz {L}_sp1{g}", f"{L}_sp1b{g}:"],
            3: [f"v_add_u32 v{V_AD}, s75, v2", "s_add_u32 s73, s73, 1", "s_cmp_ge_u32 s73, 13", f"s_cbranch_scc1 {L}_tail{g}"] + d[:3] + [f"{L}_tailb{g}:"],
            4: d[3:5] + [f"v_add_u32 v{V_K}, 1, v{V_K}"],
            6: d[5:],
            8: kv_reads(0),
            11: ["s_waitcnt vmcnt(2)", f"ds_write_b32 v{V_PW}, v{V_K}"],
        }
        phase(SA, SB, OA, OB, VB[0] + 4, KB[1], QB, CB, VB[1], point, B[0], B[3])
        phase(SB, SA, OB, OA, VB[1] + 4, KB[0], QA, CA, VB[1], {POS[1]: ["s_waitcnt lgkmcnt(0)"], 14: ["s_cmp_eq_u32 s73, 16"]}, B[1], B[0])
        a(f"s_cbranch_scc1 {L}_done")
        a.label(f"{L}_mid{g}")
        phase(SA, SB, OA, OB, VB[1] + 4, KB[0], QB, CB, VB[0], {8: kv_reads(1)}, B[2], B[1])
        phase(SB, SA, OB, OA, VB[0] + 4, KB[1], QA, CA, VB[0], {POS[1]: ["s_waitcnt lgkmcnt(0)"], 13: [f"ds_read_b32 v{V_C}, v{V_PR}"]}, B[3], B[2])
        a(f"s_branch {L}_loop{g}")
        spin(f"{L}_sp1{g}")
        a(f"s_branch {L}_sp1b{g}")
        a.label(f"{L}_tail{g}")
        a("s_waitcnt vmcnt(1)")
        a("s_cmp_eq_u32 s73, 13")
        a(f"s_cbranch_scc1 {L}_tailb{g}")
        a("s_waitcnt vmcnt(0)")
        a(f"s_branch {L}_tailb{g}")
    a.label(f"{L}_done")
    a("s_setprio 3")
    a("s_mul_i32 s8, s62, 3072")
    a("s_add_u32 s8, s8, 4096")
    a(pv(OB, VB[1] + 4, SB + 8))
    stamp(8)
    a("s_add_u32 s9, s8, s14")
    a(f"v_add_u32 v{TT}, s9, v2")
    a(f"s_sub_u32 s9, {2*L_KV + KV_SZ}, s14")
    a("s_add_u32 s9, s9, s8")
    a(f"v_add_u32 v{TT+1}, s9, v2")
    a(f"v_xor_b32 v{TT+2}, 16, v{V_PW}")
    a.label(f"{L}_fin")
    a(f"v_mov_b32 v{TT+3}, 0x7e800000")
    a("s_mov_b64 s[8:9], -1")
    for r in [OA + i for i in range(9)] + [OB + i for i in range(9)]:
        a(f"v_cmp_lt_f32 vcc, abs(v{r}), v{TT+3}")
        a("s_and_b64 s[8:9], s[8:9], vcc")
    a("s_cmp_eq_u64 s[8:9], -1")
    a("s_cselect_b32 s65, 1, 2")
    a("s_max_u32 s65, s65, s64")
    a(f"v_mov_b32 v{TT+3}, s65")
    a("s_cmp_eq_u32 s63, 0")
    a(f"s_cbranch_scc1 {L}_w0")
    a(f"ds_write_b128 v{TT}, {vr(OA,4)}")
    a(f"ds_write_b128 v{TT}, {vr(OA+4,4)} offset:1024")
    a(f"ds_write_b32 v{TT}, v{OA+8} offset:2048")
    a(f"ds_write_b32 v{V_PW}, v{TT+3} offset:32")
    for i in range(0, 10, 2):
        a(f"v_mov_b64 {vr(SB+i,2)}, {vr(OB+i,2)}")
    a(f"s_branch {L}_w1")
    a.label(f"{L}_w0")
    a(f"ds_write_b128 v{TT}, {vr(OB,4)}")
    a(f"ds_write_b128 v{TT}, {vr(OB+4,4)} offset:1024")
    a(f"ds_write_b32 v{TT}, v{OB+8} offset:2048")
    a(f"ds_write_b32 v{V_PW}, v{TT+3} offset:32")
    for i in range(0, 10, 2):
        a(f"v_mov_b64 {vr(SB+i,2)}, {vr(OA+i,2)}")
    a.label(f"{L}_w1")
    a("s_add_u32 s8, s71, s63")
    a(f"s_mul_i32 s8, s8, {AF_KSTEPS}")
    a("s_add_u32 s8, s8, s60")
    a("s_lshl_b32 s8, s8, 10")
    a(f"s_add_u32 s8, s8, {WS_AF}")
    a(f"s_branch {L}_xw")
    a.label(f"{L}_xs")
    a("s_sleep 2")
    a.label(f"{L}_xw")
    a(f"ds_read_b32 v{SA+9}, v{TT+2} offset:32")
    a(f"ds_read_b128 {vr(SA,4)}, v{TT+1}")
    a(f"ds_read_b128 {vr(SA+4,4)}, v{TT+1} offset:1024")
    a(f"ds_read_b32 v{SA+8}, v{TT+1} offset:2048")
    a("s_waitcnt lgkmcnt(0)")
    a(f"v_cmp_gt_u32 vcc, s64, v{SA+9}")
    a(f"s_cbranch_vccnz {L}_xs")
    a(f"v_readfirstlane_b32 s9, v{SA+9}")
    a("s_max_u32 s9, s9, s65")
    a("s_cmp_lg_u32 s9, s64")
    a(f"s_cbranch_scc1 {L}_fallback")
    a(f"v_add_f32 v{SB+8}, v{SB+8}, v{SA+8}")
    a(f"v_rcp_f32 v{SB+8}, v{SB+8}")
    for i in range(0, 8, 2):
        a(f"v_pk_add_f32 {vr(SB+i,2)}, {vr(SB+i,2)}, {vr(SA+i,2)}")
    for i in range(8):
        a(f"v_mul_f32 v{SB+i}, v{SB+i}, v{SB+8}")
    for i in range(4):
        a(f"v_cvt_pk_bf16_f32 v{SA+i}, v{SB+2*i}, v{SB+2*i+1}")
    a(f"buffer_store_dwordx4 {vr(SA,4)}, v2, {sr(R_WS)}, s8 offen sc1")
    if prof == 2:
        stamp(4)
    prof_end()
    a.label(f"{L}_end")
    a("s_endpgm")
    a.label(f"{L}_fallback")
    a("s_mov_b32 s64, 4")
    a("s_mov_b32 s72, s70")
    a("s_mov_b32 s73, 32")
    a("v_mov_b32 v4, 0xff800000")
    a("v_mov_b32 v5, 0xff800000")
    a.label(f"{L}_fb_loop")
    a(f"buffer_load_dwordx4 {vr(KB[0],4)}, v2, {sr(R_WS)}, s72 offen sc1")
    a("s_add_u32 s72, s72, 3072")
    a("s_waitcnt vmcnt(0)")
    a(f"v_mfma_f32_32x32x16_bf16 {vr(SA,16)}, {vr(KB[0],4)}, {vr(QA,4)}, 0")
    a(f"v_mfma_f32_32x32x16_bf16 {vr(SB,16)}, {vr(KB[0],4)}, {vr(QB,4)}, 0")
    a("s_nop 12")
    for i in range(0, 16, 2):
        a(f"v_max3_f32 v4, v4, v{SA+i}, v{SA+i+1}")
    for i in range(0, 16, 2):
        a(f"v_max3_f32 v5, v5, v{SB+i}, v{SB+i+1}")
    a("s_sub_u32 s73, s73, 1")
    a("s_cmp_lg_u32 s73, 0")
    a(f"s_cbranch_scc1 {L}_fb_loop")
    crosshalf_max(4, 5, TT + 4, TT + 5)
    a(f"v_mov_b32 v{TT+4}, 3")
    a(f"ds_write_b64 v{TT}, v[4:5] offset:2056")
    a(f"ds_write_b32 v{V_PW}, v{TT+4} offset:32")
    a.label(f"{L}_fb_w")
    a(f"ds_read_b32 v{TT+5}, v{TT+2} offset:32")
    a(f"ds_read_b64 {vr(TT+6,2)}, v{TT+1} offset:2056")
    a("s_waitcnt lgkmcnt(0)")
    a(f"v_cmp_gt_u32 vcc, 3, v{TT+5}")
    a(f"s_cbranch_vccnz {L}_fb_w")
    a(f"v_max_f32 v4, v4, v{TT+6}")
    a(f"v_max_f32 v5, v5, v{TT+7}")
    for i in range(16):
        a(f"v_sub_f32 v{CA+i}, 0, v4")
        a(f"v_sub_f32 v{CB+i}, 0, v5")
    for i in range(0, 32, 2):
        a(f"v_mov_b64 {vr(OA+i,2)}, 0")
    a("s_mov_b32 s72, s70")
    a("s_mov_b32 s73, 32")
    a.label(f"{L}_fb_2")
    a(f"buffer_load_dwordx4 {vr(KB[0],4)}, v2, {sr(R_WS)}, s72 offen sc1")
    a("s_mov_b64 exec, s[66:67]")
    a(f"buffer_load_dwordx4 {vr(VB[0],4)}, v2, {sr(R_WS)}, s72 offen offset:1024 sc1")
    a(f"buffer_load_dwordx4 {vr(VB[0]+4,4)}, v2, {sr(R_WS)}, s72 offen offset:1280 sc1")
    a("s_mov_b64 exec, -1")
    a("s_add_u32 s72, s72, 3072")
    a("s_waitcnt vmcnt(0)")
    a(f"v_mfma_f32_32x32x16_bf16 {vr(SA,16)}, {vr(KB[0],4)}, {vr(QA,4)}, {vr(CA,16)}")
    a(f"v_mfma_f32_32x32x16_bf16 {vr(SB,16)}, {vr(KB[0],4)}, {vr(QB,4)}, {vr(CB,16)}")
    a("s_nop 12")
    for i in range(32):
        a(f"v_exp_f32 v{SA+i}, v{SA+i}")
    a("s_nop 2")
    a(pv(OA, VB[0], SA))
    a(pv(OB, VB[0], SB))
    a(pv(OA, VB[0] + 4, SA + 8))
    a(pv(OB, VB[0] + 4, SB + 8))
    a("s_sub_u32 s73, s73, 1")
    a("s_cmp_lg_u32 s73, 0")
    a("s_nop 12")
    a(f"s_cbranch_scc1 {L}_fb_2")
    a(f"s_branch {L}_fin")

    a.label(f"{L}_ffn")
    F_AX = 8
    F_AW, F_CW, F_K, F_C, F_PW, F_PR = 12, 13, 14, 15, 16, 17
    FT = 18
    F_B = [28, 48]
    F_ACC = 68
    a("s_sub_u32 s7, s3, 8")
    a(f"v_lshrrev_b32 v{FT}, 3, v1")
    a(f"v_mul_u32_u24 v{FT}, 3072, v{FT}")
    a(f"v_bfe_u32 v{FT+1}, v1, 4, 1")
    a(f"v_lshlrev_b32 v{FT+1}, 1, v{FT+1}")
    a(f"v_and_b32 v{FT+2}, 7, v1")
    a(f"v_xor_b32 v{FT+1}, v{FT+1}, v{FT+2}")
    a(f"v_lshl_add_u32 v4, v{FT+1}, 4, v{FT}")
    a("v_xor_b32 v5, 64, v4")
    a(f"v_add_u32 v5, {8*3072}, v5")
    a("s_lshl_b32 s13, s5, 7")
    a(f"s_mul_i32 s8, s7, {16*3072}")
    a("s_add_u32 s13, s13, s8")
    a("s_mul_i32 s14, s7, 6144")
    a(f"s_add_u32 s14, s14, {L_RING}")
    a("s_mov_b32 s11, s10")

    def dma_blk(b):
        a(f"s_add_u32 m0, s14, {24576 * (b & 3)}")
        a(f"s_mul_i32 s9, s11, {64*3072}")
        a("s_add_u32 s9, s9, s13")
        for g in range(3):
            a(f"buffer_load_dwordx4 v4, {sr(R_WQ)}, s9 offen offset:{1024*g} lds")
        a("s_add_u32 m0, m0, 3072")
        a("s_add_u32 s11, s11, 1")
        for g in range(3):
            a(f"buffer_load_dwordx4 v5, {sr(R_WQ)}, s9 offen offset:{1024*g} lds")
        a("s_and_b32 s11, s11, 7")

    a("s_waitcnt lgkmcnt(0)")
    for r, ka in ((R_WG, KA_WG), (R_WU, KA_WU), (R_WD, KA_WD), (R_WO, KA_WO), (R_OUT, KA_OUT)):
        a(f"s_load_dwordx2 s[{r}:{r+1}], s[0:1], {ka}")
    a("s_memrealtime s[68:69]")
    if xbar:
        a("s_barrier")
    for b in range(pro):
        dma_blk(b)
    for r, n in ((R_WG, 512*1376*2), (R_WD, 1376*512*2), (R_WO, 512*512*2), (R_OUT, 2048*512*2)):
        a(f"s_mov_b32 s{r+2}, {n}")
        a(f"s_mov_b32 s{r+3}, 0x20000")
    a("s_lshr_b32 s20, s7, 1")
    a("s_mul_i32 s60, s5, 11")
    a("s_min_u32 s60, s60, 75")
    a("s_lshl_b32 s21, s60, 5")
    a(f"s_mul_i32 s22, s20, {8*2752}")
    a("s_add_u32 s22, s22, s21")
    a("s_movk_i32 s21, 2752")
    for i in range(3):
        a(f"v_add_u32 v{FT+2}, {64*i}, v1")
        a(f"v_mul_u32_u24 v{FT}, 745, v{FT+2}")
        a(f"v_lshrrev_b32 v{FT}, 14, v{FT}")
        a(f"v_mul_u32_u24 v{FT+1}, 22, v{FT}")
        a(f"v_sub_u32 v{FT+1}, v{FT+2}, v{FT+1}")
        a(f"v_lshl_add_u32 v{FT+1}, v{FT+1}, 4, s22")
        a(f"v_mad_u32_u24 v{F_D+i}, v{FT}, s21, v{FT+1}")
        if i:
            a(f"v_subrev_u32 v{F_D+i}, {1024*i}, v{F_D+i}")
    a("s_mul_i32 s21, s7, 3")
    a("s_add_u32 s60, s60, s21")
    a(f"s_mul_i32 s61, s20, {8*352}")
    a(f"s_mul_i32 s21, s17, {FR_UP}")
    a("s_add_u32 s61, s61, s21")
    a(f"s_add_u32 s61, s61, {L_FR}")
    a(f"s_add_u32 s62, s61, {5 * FR_SLOT}")
    a("s_mov_b32 s64, s61")
    a(f"s_mul_i32 s63, s10, {64*2752}")
    a("s_lshr_b32 s21, s2, 3")
    a("s_lshl_b32 s21, s21, 1")
    a("s_add_u32 s21, s21, s20")
    a(f"s_mul_i32 s21, s21, {8*2752}")
    a("s_and_b32 s22, s2, 4")
    a(f"s_mul_i32 s22, s22, {1408//4}")
    a("s_add_u32 s70, s21, s22")
    a(f"s_add_u32 s71, s70, {4*2752}")
    a(f"v_lshrrev_b32 v{FT+8}, 4, v1")
    a(f"v_mul_u32_u24 v{FT+8}, 2752, v{FT+8}")
    a(f"v_and_b32 v{FT+9}, 15, v1")
    a(f"v_min_u32 v{FT+9}, 11, v{FT+9}")
    a(f"v_lshl_add_u32 v{FT+8}, v{FT+9}, 7, v{FT+8}")
    a("s_mov_b32 s66, -1")
    a("s_mov_b32 s67, 0xffff")
    a(f"v_and_b32 v{FT}, 31, v1")
    a(f"v_lshrrev_b32 v{FT+1}, 5, v1")
    a(f"v_bfe_u32 v{FT+2}, v1, 1, 3")
    a(f"v_xor_b32 v{FT+2}, v{FT+2}, v{FT+1}")
    a(f"v_lshlrev_b32 v{FT+1}, 7, v{FT}")
    a(f"v_lshl_add_u32 v3, v{FT+2}, 4, v{FT+1}")
    a(f"s_mov_b32 s8, {L_MISC}")
    a(f"v_lshl_add_u32 v{FT+7}, v{FT}, 2, s8")
    a("s_cmp_eq_u32 s17, 1")
    a("s_waitcnt lgkmcnt(0)")
    a(f"s_cselect_b32 s{R_WG}, s{R_WU}, s{R_WG}")
    a(f"s_cselect_b32 s{R_WG+1}, s{R_WU+1}, s{R_WG+1}")
    a("s_add_u32 s8, s2, s7")
    a("s_cmp_lg_u32 s8, 0")
    a(f"s_cbranch_scc1 {L}_f_notag")
    a("s_or_b32 s68, s68, 1")
    a(f"v_mov_b32 v{FT}, s68")
    a("s_mov_b64 exec, 1")
    a(f"buffer_store_dword v{FT}, off, {sr(R_DBG)}, 0 sc1")
    a("s_mov_b64 exec, -1")
    a.label(f"{L}_f_notag")
    a("s_lshl_b32 s8, s7, 2")
    a(f"s_add_u32 s8, s8, {L_MISC + 64}")
    a(f"v_mov_b32 v{F_PW}, s8")
    a(f"v_mov_b32 v{F_K}, 1")
    a(f"v_mov_b32 v{F_AX}, v3")
    for q in range(1, 4):
        a(f"v_xor_b32 v{F_AX+q}, {32*q}, v3")
    a(f"v_lshrrev_b32 v{FT}, 5, v1")
    a(f"v_bfe_u32 v{FT+1}, v1, 2, 2")
    a(f"v_lshl_add_u32 v{FT}, v{FT}, 3, v{FT+1}")
    a(f"v_mul_u32_u24 v{FT}, 352, v{FT}")
    a(f"v_and_b32 v{FT+2}, 3, v1")
    a(f"v_lshl_add_u32 v{FT}, v{FT+2}, 3, v{FT}")
    a(f"v_bfe_u32 v{FT+1}, v1, 4, 1")
    a(f"v_mul_u32_u24 v{FT+1}, {FR_UP}, v{FT+1}")
    a("s_mul_i32 s8, s7, 96")
    a(f"s_add_u32 s8, s8, {L_FR}")
    a(f"v_add3_u32 v{F_AW}, v{FT}, v{FT+1}, s8")
    a(f"v_mov_b32 v{F_CW}, v{F_AW}")

    def reads_f(q):
        b = F_B[q % 2]
        r = [f"ds_read_b128 {vr(b+4*sx,4)}, v{F_AX+q} offset:{4096*sx}" for sx in range(2)]
        for u in range(3):
            for e in range(2):
                r.append(f"ds_read_b64_tr_b16 {vr(b+8+4*u+2*e,2)}, v{F_CW} offset:{4*e*352 + 32*u}")
        return r

    def mfma_f(q):
        b = F_B[q % 2]
        r = []
        for u in range(3):
            for sx in range(2):
                acc = F_ACC + 16 * (2 * u + sx)
                r.append(f"v_mfma_f32_32x32x16_bf16 {vr(acc,16)}, {vr(b+8+4*u,4)}, {vr(b+4*sx,4)}, {vr(acc,16)}")
        return r

    a(f"s_mov_b32 s8, {L_MISC + 64}")
    a(f"v_lshl_add_u32 v{F_PR}, v{FT+2}, 2, s8")
    for i in range(0, 96, 2):
        a(f"v_mov_b64 {vr(F_ACC+i,2)}, 0")
    q_ = [("w", b, 6) for b in range(pro)]
    nb = pro
    for c in range(8):
        k = max(i for i, e in enumerate(q_) if e[:2] == ("w", c))
        a(f"s_waitcnt vmcnt({sum(e[2] for e in q_[k+1:])}) lgkmcnt(0)")
        a("s_barrier")
        while nb <= min(c + 3, 7):
            dma_blk(nb)
            q_.append(("w", nb, 6))
            nb += 1
        if c == pf:
            a(f"buffer_load_dword v{FT+9}, v{FT+8}, {sr(R_WG)}, s70 offen")
            a(f"buffer_load_dword v{FT+9}, v{FT+8}, {sr(R_WG)}, s71 offen")
            q_.append(("p", 0, 2))
        if c == 5:
            a(f"ds_write_b32 v{FT+7}, v{E_Z}")
        for i in range(fsched[c]):
            for l in dma_f():
                a(l)
            q_.append(("f", 0, 3))
    assert sum(fsched) == 5 and sum(fsched[:5]) == 0 and fsched[5] <= 2 and fsched[5] + fsched[6] <= 4
    ffn_start = len(a.lines)
    stamp(1)
    if "noffn" in dbg:
        prof_end()
        a("s_endpgm")
    if prio_ffn:
        a(f"s_setprio {prio_ffn}")
    a("s_waitcnt vmcnt(12)")
    a(f"ds_write_b32 v{F_PW}, v{F_K}")
    a.label(f"{L}_f_sp")
    a(f"ds_read_b32 v{F_C}, v{F_PR}")
    a("s_waitcnt lgkmcnt(0)")
    a(f"v_cmp_lt_u32 vcc, v{F_C}, v{F_K}")
    a(f"s_cbranch_vccnz {L}_f_sp")
    for l in reads_f(0):
        a(l)
    a(f"v_add_u32 v{F_AX}, 8192, v{F_AX}")
    a(f"v_mov_b32 v{F_K}, 2")
    a("s_waitcnt vmcnt(9) lgkmcnt(0)")
    a(f"ds_write_b32 v{F_PW}, v{F_K}")
    a(f"ds_read_b32 v{F_C}, v{F_PR}")
    a("s_mov_b32 s65, 0")
    a("s_mov_b32 s68, 0")
    a.label(f"{L}_f_loop")
    for q in range(4):
        m = mfma_f(q)
        qn = (q + 1) % 4
        r = reads_f(qn)
        d = dma_f()
        a(f"s_add_u32 s65, s65, {FR_SLOT}")
        a(f"s_cmp_eq_u32 s65, {5 * FR_SLOT}")
        a("s_cselect_b32 s65, 0, s65")
        a(m[0])
        a(f"v_add_u32 v{F_CW}, s65, v{F_AW}")
        a("s_waitcnt lgkmcnt(0)")
        a(f"v_cmp_lt_u32 vcc, v{F_C}, v{F_K}")
        a(f"s_cbranch_vccnz {L}_f_sp{q}")
        a.label(f"{L}_f_spb{q}")
        for l in r[:4]:
            a(l)
        a(m[1])
        for l in r[4:]:
            a(l)
        a(f"v_add_u32 v{F_AX+qn}, 8192, v{F_AX+qn}")
        a(m[2])
        a("s_add_u32 s68, s68, 1")
        a("s_cmp_ge_u32 s68, 28")
        a(f"s_cbranch_scc1 {L}_f_tl{q}")
        for l in d:
            a(l)
        a.label(f"{L}_f_tlb{q}")
        a(m[3])
        a(f"v_add_u32 v{F_K}, 1, v{F_K}")
        a("s_waitcnt vmcnt(9) lgkmcnt(0)")
        a(f"ds_write_b32 v{F_PW}, v{F_K}")
        if skip3:
            a("s_cmp_eq_u32 s7, 3")
            a(f"s_cbranch_scc1 {L}_f_sk{q}")
        a(m[4])
        a(m[5])
        a.label(f"{L}_f_sk{q}")
        a(f"ds_read_b32 v{F_C}, v{F_PR}")
    if pf2:
        a(f"s_cmp_eq_u32 s68, {pf2}")
        a(f"s_cbranch_scc1 {L}_f_pf")
    a("s_cmp_lt_u32 s68, 32")
    a(f"s_cbranch_scc1 {L}_f_loop")
    a(f"s_branch {L}_f_done")
    if pf2:
        a.label(f"{L}_f_pf")
        a("s_lshr_b32 s8, s2, 3")
        a("s_lshl_b32 s8, s8, 2")
        a("s_add_u32 s8, s8, s7")
        a(f"s_mul_i32 s9, s8, {86*128}")
        a("s_lshl_b32 s8, s8, 12")
        a(f"v_lshlrev_b32 v{FT}, 7, v1")
        a(f"buffer_load_dword v167, v{FT}, {sr(R_WD)}, s9 offen")
        a(f"s_add_u32 s9, s9, {54*128}")
        a("s_mov_b32 exec_hi, 0")
        a(f"buffer_load_dword v167, v{FT}, {sr(R_WD)}, s9 offen")
        a(f"buffer_load_dword v167, v{FT}, {sr(R_WO)}, s8 offen")
        a("s_mov_b32 exec_hi, -1")
        a(f"s_branch {L}_f_loop")
    for q in range(4):
        a.label(f"{L}_f_sp{q}")
        a(f"ds_read_b32 v{F_C}, v{F_PR}")
        a("s_waitcnt lgkmcnt(0)")
        a(f"v_cmp_lt_u32 vcc, v{F_C}, v{F_K}")
        a(f"s_cbranch_vccnz {L}_f_sp{q}")
        a(f"s_branch {L}_f_spb{q}")
        a.label(f"{L}_f_tl{q}")
        a("s_waitcnt vmcnt(0)")
        a(f"s_branch {L}_f_tlb{q}")
    a.label(f"{L}_f_done")
    stamp(2)
    a("s_mul_i32 s61, s7, 12288")
    a(f"s_add_u32 s61, s61, {L_FR}")
    a(f"v_mov_b32 v166, v{F_PR}")
    a(f"buffer_load_dword v165, off, {sr(R_DBG)}, 0 sc1")
    D_DW = 4
    D_AW = 6
    a("s_and_b32 s68, s2, 7")
    a("s_lshl_b32 s68, s68, 2")
    a("s_bfe_u32 s8, s2, 0x20003")
    a("s_add_u32 s68, s68, s8")
    a("s_lshr_b32 s69, s2, 5")
    a(f"v_lshrrev_b32 v{FT+3}, 3, v1")
    a(f"v_bfe_u32 v{FT+4}, v1, 4, 1")
    a(f"v_lshlrev_b32 v{FT+4}, 2, v{FT+4}")
    a(f"v_and_b32 v{FT+2}, 7, v1")
    a(f"v_xor_b32 v{FT+4}, v{FT+4}, v{FT+2}")
    a(f"v_lshlrev_b32 v{FT+4}, 4, v{FT+4}")
    a(f"v_lshl_add_u32 v{D_DW}, v{FT+3}, 10, v{FT+4}")
    a("s_lshl_b32 s8, s69, 7")
    a(f"v_add_u32 v{D_DW}, s8, v{D_DW}")
    a(f"v_add_u32 v{D_DW+1}, {8192 - 1024}, v{D_DW}")
    a(f"v_lshrrev_b32 v{FT+3}, 5, v1")
    a(f"v_bfe_u32 v{FT+4}, v1, 2, 2")
    a(f"v_lshl_add_u32 v{FT+3}, v{FT+3}, 2, v{FT+4}")
    a(f"v_lshlrev_b32 v{FT+3}, 7, v{FT+3}")
    a(f"v_bfe_u32 v{FT+4}, v1, 3, 1")
    a(f"v_lshl_add_u32 v{FT+3}, v{FT+4}, 6, v{FT+3}")
    a(f"v_bfe_u32 v{FT+4}, v1, 4, 1")
    a(f"v_lshl_add_u32 v{FT+3}, v{FT+4}, 5, v{FT+3}")
    a(f"v_and_b32 v{FT+4}, 3, v1")
    a(f"v_lshl_add_u32 v{FT+3}, v{FT+4}, 3, v{FT+3}")
    a("s_lshl_b32 s8, s7, 5")
    a("s_and_b32 s8, s8, 64")
    a(f"v_xor_b32 v{FT+3}, s8, v{FT+3}")
    a(f"v_add_u32 v{D_AW}, s61, v{FT+3}")
    a(f"v_xor_b32 v{D_AW+1}, 64, v{D_AW}")
    a("s_lshl_b32 s65, s7, 14")
    a(f"v_add_u32 v10, s65, v{FT+3}")
    a(f"v_xor_b32 v11, 64, v10")
    a("s_lshl_b32 s8, s4, 1")
    a(f"s_mul_i32 s8, s8, {AF_KSTEPS}")
    a("s_add_u32 s8, s8, s60")
    a("s_lshl_b32 s8, s8, 10")
    a(f"s_add_u32 s8, s8, {WS_AF + 32*1024}")
    a(f"s_add_u32 s9, s8, {AF_KSTEPS*1024}")
    a(f"s_mov_b32 s10, 0x{f2u(GC1):08x}")
    a(f"v_mov_b32 v{FT+8}, 0x{f2u(GC0):08x}")
    G = F_B[0]
    for u in range(3):
        if u == 2:
            a("s_cmp_eq_u32 s7, 3")
            a(f"s_cbranch_scc1 {L}_f_gd")
        for sx in range(2):
            A = F_ACC + 16 * (2 * u + sx)
            for r in range(8):
                a(f"v_mul_f32 v{G+r}, v{A+r}, v{A+r}")
            for r in range(8):
                a(f"v_fma_f32 v{G+r}, v{G+r}, s10, v{FT+8}")
            for r in range(8):
                a(f"v_mul_f32 v{G+r}, v{G+r}, v{A+r}")
            for r in range(8):
                a(f"v_exp_f32 v{G+r}, v{G+r}")
            for r in range(8):
                a(f"v_mul_f32 v{A+r}, v{A+r}, v{A+8+r}")
            for r in range(8):
                a(f"v_add_f32 v{G+r}, 1.0, v{G+r}")
            for r in range(8):
                a(f"v_rcp_f32 v{G+r}, v{G+r}")
            a("s_nop 0")
            for r in range(8):
                a(f"v_mul_f32 v{A+r}, v{A+r}, v{G+r}")
            for r in range(4):
                a(f"v_cvt_pk_bf16_f32 v{A+8+r}, v{A+2*r}, v{A+2*r+1}")
            a(f"buffer_store_dwordx4 {vr(A+8,4)}, v2, {sr(R_WS)}, s{8+sx} offen offset:{1024*u} sc1")
    a.label(f"{L}_f_gd")
    a("s_lshl_b32 s8, s4, 5")
    a("s_lshl_b32 s9, s5, 2")
    a("s_add_u32 s8, s8, s9")
    a("s_add_u32 s8, s8, s7")
    a(f"s_mul_i32 s8, s8, {fstride}")
    a(f"s_add_u32 s8, s8, {WS_FLAG + 65536}")
    a("s_waitcnt vmcnt(0)")
    get_tag(f"{L}_ftag", 165)
    a("s_mov_b64 exec, 1")
    a(f"buffer_store_dword v165, off, {sr(R_WS)}, s8 sc1")
    a("s_mov_b64 exec, -1")
    stamp(3)
    if "nodown" in dbg:
        prof_end()
        a("s_endpgm")
    D_W = [12, 20]
    D_XR = 28
    D_A = 36
    D_ACC = 100
    DT = 164
    a("s_cmp_eq_u32 s7, 3")
    a("s_cselect_b32 s71, 20, 22")
    a("s_lshl_b32 s8, s68, 1")
    a("s_add_u32 s8, s8, s69")
    a("s_and_b32 s8, s8, 7")
    a("s_mul_i32 s8, s8, s71")
    a("s_lshr_b32 s8, s8, 3")
    a("s_mul_i32 s70, s7, 22")
    a("s_lshl_b32 s12, s70, 14")
    a("s_add_u32 s9, s70, s71")
    a("s_lshl_b32 s13, s9, 14")
    a("s_add_u32 s8, s8, s70")
    a("s_lshl_b32 s72, s8, 14")
    a(f"s_mul_i32 s74, s68, {2 * AF_KSTEPS * 1024}")
    a(f"s_add_u32 s74, s74, {WS_AF}")
    a(f"s_add_u32 s14, s74, {32 * 1024}")
    a("s_mov_b32 s73, s72")
    a(f"s_mul_i32 s8, s17, {AF_KSTEPS * 1024}")
    a("v_add_u32 v3, s8, v2")
    a(f"s_sub_u32 s8, {AF_KSTEPS * 1024}, s8")
    a("v_add_u32 v9, s8, v2")

    def issue_w(slot):
        return [f"s_add_u32 m0, s61, {slot * 2048}", "s_nop 0",
                f"buffer_load_dwordx4 v{D_DW}, {sr(R_WD)}, s72 offen lds",
                f"buffer_load_dwordx4 v{D_DW+1}, {sr(R_WD)}, s72 offen offset:1024 lds",
                "s_add_u32 s72, s72, 16384", "s_cmp_eq_u32 s72, s13", "s_cselect_b32 s72, s12, s72"]

    def issue_a(slot):
        return ["s_lshr_b32 s8, s73, 4", "s_add_u32 s8, s8, s14",
                f"buffer_load_dwordx4 {vr(D_A+8*slot,4)}, v3, {sr(R_WS)}, s8 offen sc1",
                f"buffer_load_dwordx4 {vr(D_A+8*slot+4,4)}, v9, {sr(R_WS)}, s8 offen sc1",
                "s_add_u32 s73, s73, 16384", "s_cmp_eq_u32 s73, s13", "s_cselect_b32 s73, s12, s73"]

    def reads_d(k, ring, aw):
        b = D_W[k % 2]
        return [f"ds_read_b64_tr_b16 {vr(b+4*q+2*e,2)}, v{aw+q} offset:{(k % ring) * 2048 + e * 1024}" for q in range(2) for e in range(2)]

    def mfma_d(k):
        b = D_W[k % 2]
        A = D_A + 8 * k
        return [f"v_mfma_f32_32x32x16_bf16 {vr(D_ACC+16*(2*q+sx),16)}, {vr(b+4*q,4)}, {vr(A+4*sx,4)}, {vr(D_ACC+16*(2*q+sx),16)}"
                for q in range(2) for sx in range(2)]

    a.label(f"{L}_xfree")
    a(f"ds_read_b32 v{DT+1}, v166")
    a("s_waitcnt lgkmcnt(0)")
    a(f"v_cmp_gt_u32 vcc, 34, v{DT+1}")
    a(f"s_cbranch_vccnz {L}_xfree")
    for k in range(RING):
        if 2 * k > thr:
            a(f"s_waitcnt vmcnt({thr})")
        for l in issue_w(k):
            a(l)
    a("s_lshl_b32 s8, s68, 1")
    a("s_and_b32 s9, s7, 1")
    a("s_add_u32 s8, s8, s9")
    a("s_lshl_b32 s8, s8, 15")
    a("s_lshl_b32 s9, s69, 7")
    a("s_add_u32 s8, s8, s9")
    a("s_lshr_b32 s9, s7, 1")
    a("s_lshl_b32 s9, s9, 6")
    a("s_add_u32 s75, s8, s9")
    a(f"v_and_b32 v{DT}, 31, v1")
    a(f"v_lshlrev_b32 v{DT}, 10, v{DT}")
    a(f"v_lshrrev_b32 v{DT+1}, 5, v1")
    a(f"v_lshl_add_u32 v8, v{DT+1}, 4, v{DT}")
    for i in range(0, 64, 2):
        a(f"v_mov_b64 {vr(D_ACC+i,2)}, 0")

    def load_wo():
        a("s_lshl_b32 s8, s7, 17")
        a("s_mov_b32 m0, s65")
        a("s_mov_b32 s9, 8")
        a.label(f"{L}_wo")
        a(f"s_waitcnt vmcnt({thr})")
        a(f"buffer_load_dwordx4 v{D_DW}, {sr(R_WO)}, s8 offen lds")
        a(f"buffer_load_dwordx4 v{D_DW+1}, {sr(R_WO)}, s8 offen offset:1024 lds")
        a("s_add_u32 m0, m0, 2048")
        a("s_add_u32 s8, s8, 16384")
        a("s_sub_u32 s9, s9, 1")
        a("s_cmp_lg_u32 s9, 0")
        a(f"s_cbranch_scc1 {L}_wo")
        a(f"buffer_load_dwordx4 {vr(D_XR,4)}, v8, {sr(R_X)}, s75 offen")
        a(f"buffer_load_dwordx4 {vr(D_XR+4,4)}, v8, {sr(R_X)}, s75 offen offset:32")

    if wo_early:
        load_wo()
    a("s_lshl_b32 s8, s68, 2")
    a("s_add_u32 s8, s8, s7")
    a(f"s_mul_i32 s8, s8, {8 * fstride}")
    a(f"s_add_u32 s8, s8, {WS_FLAG + 65536}")
    a("s_mov_b64 exec, 0xff")
    poll_line(f"{L}_hpoll", "s8", DT, 8, hsleep)
    a("s_mov_b64 exec, -1")
    stamp(4)
    for k in range(RING):
        for l in issue_a(k):
            a(l)
    for l in reads_d(0, RING, D_AW):
        a(l)
    a("s_waitcnt vmcnt(0)")
    a.label(f"{L}_d_loop")
    for k in range(RING):
        m = mfma_d(k)
        a(f"s_waitcnt vmcnt({4 * (RING - 2)}) lgkmcnt(0)")
        a(m[0])
        for l in reads_d(k + 1, RING, D_AW):
            a(l)
        a(m[1])
        for l in issue_w(k):
            a(l)
        a(m[2])
        a(m[3])
        if k % 2 == 1:
            a("s_sub_u32 s71, s71, 2")
            a("s_cmp_eq_u32 s71, 0")
            a(f"s_cbranch_scc1 {L}_d_done")
        for l in issue_a(k):
            a(l)
        if k % 2 == 1:
            a(f"s_cmp_le_u32 s71, {RING}")
            a(f"s_cselect_b32 s{R_WD+2}, 0, s{R_WD+2}")
            a(f"s_cselect_b32 s{R_WS+2}, 0, s{R_WS+2}")
    a(f"s_branch {L}_d_loop")
    a.label(f"{L}_d_done")
    a(f"s_mov_b32 s{R_WS+2}, {WS_SIZE}")
    stamp(5)
    if not wo_early:
        load_wo()
    a("s_lshl_b32 s73, s7, 13")
    a("s_add_u32 s73, s73, s74")
    a("s_add_u32 s74, s73, 4096")
    a(f"s_mov_b32 s22, {SPIN_MAX >> 4}")
    a("s_mov_b32 s20, 0")
    a("s_mov_b64 s[18:19], -1")
    a(f"v_and_b32 v{DT}, 7, v1")
    a(f"s_mov_b32 s8, {L_MISC}")
    a(f"v_lshl_add_u32 v{DT}, v{DT}, 2, s8")
    a("v_add_u32 v4, s65, v2")
    for t in range(1, 4):
        a(f"v_xor_b32 v{4+t}, {t * 16384}, v4")
    a(f"v_and_b32 v{DT+2}, 1, v1")
    a(f"v_mul_u32_u24 v{DT+2}, {AF_KSTEPS * 1024 - 512}, v{DT+2}")
    a(f"v_and_b32 v{DT+1}, 15, v1")
    a(f"v_lshl_add_u32 v{DT+2}, v{DT+1}, 9, v{DT+2}")
    stamp(6)
    a.label(f"{L}_await")
    a(f"ds_read_b32 v{DT+1}, v{DT}")
    a("s_waitcnt lgkmcnt(0)")
    a(f"v_cmp_gt_u32 vcc, {othr}, v{DT+1}")
    a(f"s_cbranch_vccz {L}_opoll")
    a("s_sleep 4")
    a(f"s_branch {L}_await")
    a.label(f"{L}_oagain")
    if osleep:
        a(f"s_sleep {osleep}")
    a("s_sub_u32 s22, s22, 1")
    a("s_cselect_b64 s[18:19], 0, s[18:19]")
    a.label(f"{L}_opoll")
    a("s_andn2_b32 s21, 0x5555, s20")
    if hyb:
        a("s_bcnt1_i32_b32 s8, s21")
        a(f"s_cmp_le_u32 s8, {hyb}")
        a(f"s_cbranch_scc1 {L}_odir")
    a("s_mov_b64 exec, 0xffff")
    a(f"buffer_load_dword v{DT+3}, v{DT+2}, {sr(R_WS)}, s73 offen sc1")
    a("s_waitcnt vmcnt(0)")
    a(f"v_cmp_eq_u32 vcc, -1, v{DT+3}")
    a("s_mov_b64 exec, -1")
    a("s_and_b32 s8, vcc_lo, s18")
    a("s_lshr_b32 s9, s8, 1")
    a("s_or_b32 s8, s8, s9")
    a("s_andn2_b32 s21, s21, s8")
    a(f"s_cbranch_scc0 {L}_oagain")
    a.label(f"{L}_odir")
    stamp(7)
    for k in range(8):
        a(f"s_bitcmp0_b32 s21, {2*k}")
        a(f"s_cbranch_scc1 {L}_ol{k}")
        for sx in range(2):
            a(f"buffer_load_dwordx4 {vr(D_A+8*k+4*sx,4)}, v{9 if sx else 3}, {sr(R_WS)}, s{73 + k//4} offen offset:{(k%4)*1024} sc1")
        a.label(f"{L}_ol{k}")
    a("s_waitcnt vmcnt(0)")
    for k in range(8):
        A = D_A + 8 * k
        a(f"s_bitcmp0_b32 s21, {2*k}")
        a(f"s_cbranch_scc1 {L}_om{k}")
        for l in reads_d(k, 8, 10):
            a(l)
        a(f"v_max3_u32 v{DT}, v{A}, v{A+1}, v{A+2}")
        a(f"v_max3_u32 v{DT+1}, v{A+3}, v{A+4}, v{A+5}")
        a(f"v_max3_u32 v{DT}, v{DT}, v{A+6}, v{A+7}")
        a(f"v_max_u32 v{DT}, v{DT}, v{DT+1}")
        a(f"v_cmp_eq_u32 vcc, -1, v{DT}")
        a("s_and_b64 vcc, vcc, s[18:19]")
        a("s_waitcnt lgkmcnt(0)")
        a(f"s_cbranch_scc1 {L}_om{k}")
        for l in mfma_d(k):
            a(l)
        a(f"s_bitset1_b32 s20, {2*k}")
        a.label(f"{L}_om{k}")
    a("s_cmp_lg_u32 s20, 0x5555")
    a(f"s_cbranch_scc1 {L}_oagain")
    stamp(8)
    for i in range(8):
        a(f"v_lshlrev_b32 v{D_W[0]+2*i}, 16, v{D_XR+i}")
        a(f"v_and_b32 v{D_W[0]+2*i+1}, 0xffff0000, v{D_XR+i}")
    for t in range(1, 4):
        for g in range(4):
            a(f"ds_write_b128 v4, {vr(D_ACC+16*t+4*g,4)} offset:{t*4096 + g*1024}")
    a("s_waitcnt lgkmcnt(0)")
    a("s_barrier")
    for t in range(1, 4):
        for g in range(4):
            a(f"ds_read_b128 {vr(D_A+16*t+4*g,4)}, v{4+t} offset:{t*4096 + g*1024}")
    R = D_ACC
    for p in range(1, 4):
        a(f"s_waitcnt lgkmcnt({12 - 4*p})")
        for i in range(0, 16, 2):
            a(f"v_pk_add_f32 {vr(R+i,2)}, {vr(R+i,2)}, {vr(D_A+16*p+i,2)}")
    a("s_nop 1")
    for g2 in range(2):
        for i in range(4):
            a(f"v_permlane32_swap_b32 v{R+8*g2+i}, v{R+8*g2+4+i}")
    a("s_nop 1")
    for i in range(0, 16, 2):
        a(f"v_pk_add_f32 {vr(R+i,2)}, {vr(R+i,2)}, {vr(D_W[0]+i,2)}")
    for i in range(8):
        a(f"v_cvt_pk_bf16_f32 v{D_XR+i}, v{R+2*i}, v{R+2*i+1}")
    a(f"buffer_store_dwordx4 {vr(D_XR,4)}, v8, {sr(R_OUT)}, s75 offen")
    a(f"buffer_store_dwordx4 {vr(D_XR+4,4)}, v8, {sr(R_OUT)}, s75 offen offset:32")
    prof_end()
    a("s_endpgm")
    head, tail = a.lines[:ffn_start], a.lines[ffn_start:]
    if "f_nomfma" in dbg:
        tail = [l for l in tail if "v_mfma" not in l]
    if "f_nodma" in dbg:
        tail = [l for l in tail if not l.rstrip().endswith(" lds")]
    if "f_nolds" in dbg:
        tail = [l for l in tail if "ds_read_b128" not in l and "ds_read_b64" not in l]
    if "f_nosync" in dbg:
        tail = [l for l in tail if not l.strip().startswith(f"s_cbranch_vccnz {L}_f_sp")]
    if "f_nogelu" in dbg:
        tail = [l for l in tail if not any(k in l for k in ("v_exp", "v_rcp", "v_mul_f32", "v_fma_f32", "v_add_f32"))]
    if "nosc1" in dbg:
        head = [l.replace(" sc1", "") if "load_dwordx4" in l else l for l in head]
    ja = head.index(f"{L}_loop:"); jb = head.index(f"{L}_done:")
    lp = head[ja:jb]
    if "k_nodma" in dbg:
        lp = [l for l in lp if not l.rstrip().endswith(" lds")]
    if "k_nopv" in dbg:
        lp = [l for l in lp if "smfmac" not in l]
    if "k_noqk" in dbg:
        lp = [l for l in lp if "v_mfma" not in l]
    if "k_noexp" in dbg:
        lp = [l.replace("v_exp_f32", "v_sqrt_f32") if False else l for l in lp]
        lp = [("    v_exp_f32 v142, v143" if "v_exp_f32" in l else l) for l in lp]
    if "k_nowait" in dbg:
        lp = [l for l in lp if "vmcnt" not in l]
    if "k_nosync" in dbg:
        lp = [l for l in lp if not l.strip().startswith(f"s_cbranch_vccnz {L}_sp1")]
    head = head[:ja] + lp + head[jb:]
    ia = head.index(f"{L}_a_nopois:"); ib = head.index(f"{L}_a_nost:")
    mid = head[ia:ib]
    if "a_nomfma" in dbg:
        mid = [l for l in mid if "v_mfma" not in l]
    if "a_no16" in dbg:
        mid = [l for l in mid if "16x16x32" not in l]
    if "a_nostat" in dbg:
        mid = [l for l in mid if not any(k in l for k in ("v_fmac", "v_lshlrev_b32 v4", "0xffff0000"))]
    if "a_nolds" in dbg:
        mid = [l for l in mid if "ds_read" not in l]
    if "a_nodma" in dbg:
        mid = [l for l in mid if not l.rstrip().endswith(" lds")]
    if "a_nobar" in dbg:
        mid = [l for l in mid if "s_barrier" not in l]
    head = head[:ia] + mid + head[ib:]
    a.lines = head + tail
    return a.text(), kernel_desc(label, 168), (label, 256, 768, LDS_BYTES)


def build(list_form=False, **kw):
    import os
    ref = "cdna_kernels/" + NAME + ".s.ref"
    HEADER = open(ref).read().split("; Override launch geometry")[0] if os.path.exists(ref) else "; dev"
    b, d, l = gen(**kw)
    out = [HEADER.rstrip(), f"; @launch " + (f"kernel={l[0]} " if list_form else "") + f"grid=({l[1]},1,1) block=({l[2]},1,1) lds={l[3]}", '.amdgcn_target "amdgcn-amd-amdhsa--gfx950"', b,
           '.section .rodata,"a"', ".p2align 6", d]
    return "\n".join(out)


if __name__ == "__main__":
    import sys
    open(sys.argv[1] if len(sys.argv) > 1 else "m0.s", "w").write(build())
    open("m_prof.s", "w").write(build(prof=True))
```

```python
from common import *
import struct

def f2u(f):
    return struct.unpack("<I", struct.pack("<f", f))[0]

CQ = 0.25 * 1.4426950408889634
GC0 = -2.0 * 1.4426950408889634 * 0.7978845608028654
GC1 = GC0 * 0.044715
M_OFFSET = 96.0

WS_FLAG = 16 << 20
WS_SIZE = 17 << 20
L_X = 0
L_RING = 65536
L_KV = 122880
L_XCS, L_XST, L_XVT = L_KV, L_KV + 2048, L_KV + 4096
KV_SZ = 20480
L_MISC = 122624
L_FR = 65536
FR_SLOT, FR_UP = 11392, 5760
LDS_BYTES = 163840
R_X, R_WQ, R_WS, R_WG, R_WU, R_WD, R_WO, R_OUT, R_DBG = 24, 28, 32, 36, 40, 44, 48, 52, 56
def sr(r):
    return f"s[{r}:{r+3}]"
SPIN_MAX = 1 << 18


def gen(label=NAME + "_kernel", ipf=2, prof=False, force_fallback=False, prio_ffn=2, base0=(1,1,1,0), base1=(1,1,1,1), hi=3, dbg="", poll_sleep=1, pro=3, fpre=9, fstride=128, spoll=False, early=True, hsleep=4, RING=6, thr=4, pf=5, pf2=0, othr=16, osleep=2, ones2=True, hyb=0, POS=(2, 7, 12)):
    a = Asm()
    kernel_head(a, label)
    L = "L"
    TM = "s_memrealtime" if prof == 2 else "s_memtime"
    def stamp(i):
        if prof:
            a(f"{TM} s[{76+2*i}:{77+2*i}]")
    def prof_end():
        if not prof:
            return
        a("s_waitcnt vmcnt(0)")
        a(f"{TM} s[94:95]")
        a("s_memrealtime s[98:99]")
        a("s_waitcnt lgkmcnt(0)")
        for i in range(1, 10):
            a(f"s_sub_u32 s{76+2*i}, s{76+2*i}, s76")
        for i in range(10):
            a(f"v_mov_b32 v{8+i}, s{76+2*i}")
        a("v_mov_b32 v18, s96")
        a("v_mov_b32 v19, s98")
        a("s_mul_i32 s100, s2, 12")
        a("s_add_u32 s100, s100, s3")
        a("s_lshl_b32 s100, s100, 6")
        a(f"s_add_u32 s100, s100, {WS_PROF}")
        a(f"s_mov_b32 s{R_WS+2}, 0x4000000")
        a("v_mov_b32 v20, 0")
        a(f"buffer_store_dwordx4 v[8:11], v20, {sr(R_WS)}, s100 offen")
        a(f"buffer_store_dwordx4 v[12:15], v20, {sr(R_WS)}, s100 offen offset:16")
        a(f"buffer_store_dwordx4 v[16:19], v20, {sr(R_WS)}, s100 offen offset:32")

    V_DW, V_DX = 4, 5
    V_AX, V_AW = 8, 12
    V_NX = 20
    V_SEL, V_S1, V_S2, V_CS = 24, 28, 32, 36
    T = 40
    V_ACC = 56
    V_XB, V_WB = [72, 104], [88, 120]
    E_CW, E_CR, E_SW, E_SR, E_VW, E_VR, E_VS, E_Z = range(136, 144)
    F_D = 164
    if prof:
        a(f"{TM} s[76:77]")
        a("s_memrealtime s[96:97]")
    a(f"s_load_dwordx2 s[{R_X}:{R_X+1}], s[0:1], {KA_X}")
    a(f"s_load_dwordx2 s[{R_WQ}:{R_WQ+1}], s[0:1], {KA_WQKV}")
    a("s_cmp_ge_u32 s2, 256")
    a(f"s_cbranch_scc1 {L}_end")
    if ipf:
        a("s_getpc_b64 s[8:9]")
        a.label(f"{L}_pc")
        a("v_lshlrev_b32 v166, 7, v0")
        a(f"v_min_u32 v166, {L}_last-{L}_pc, v166")
        if ipf == 1:
            a("global_load_dword v167, v166, s[8:9]")
        else:
            a("v_mov_b32 v167, s9")
            a("v_add_co_u32 v166, vcc, s8, v166")
            a("v_addc_co_u32 v167, vcc, 0, v167, vcc")
            a("global_load_dword v167, v[166:167], off")
    a(f"v_lshrrev_b32 v{T}, 6, v0")
    a("v_and_b32 v1, 63, v0")
    a(f"v_readfirstlane_b32 s3, v{T}")
    a("s_and_b32 s4, s2, 3")
    a("s_lshl_b32 s4, s4, 3")
    a("s_bfe_u32 s8, s2, 0x30003")
    a("s_add_u32 s4, s4, s8")
    a("s_and_b32 s5, s2, 4")
    a("s_lshr_b32 s8, s2, 6")
    a("s_add_u32 s5, s5, s8")
    a(f"v_lshrrev_b32 v{T}, 3, v0")
    a(f"v_and_b32 v{T+1}, 7, v0")
    a(f"v_bfe_u32 v{T+2}, v0, 4, 3")
    a(f"v_xor_b32 v{T+3}, v{T+1}, v{T+2}")
    a(f"v_lshlrev_b32 v{T+3}, 4, v{T+3}")
    a(f"v_lshl_add_u32 v{V_DX}, v{T}, 10, v{T+3}")
    a(f"v_and_b32 v{T+2}, 1, v{T+2}")
    a(f"v_lshlrev_b32 v{T+2}, 2, v{T+2}")
    a(f"v_xor_b32 v{T+3}, v{T+1}, v{T+2}")
    a(f"v_mul_u32_u24 v{T}, 3072, v{T}")
    a(f"v_lshl_add_u32 v{V_DW}, v{T+3}, 4, v{T}")
    a("s_lshl_b32 s8, s5, 1")
    a("s_add_u32 s10, s4, s8")
    a("s_and_b32 s10, s10, 7")
    a("s_mov_b32 s11, s10")
    a("s_lshl_b32 s12, s4, 16")
    a("s_lshl_b32 s13, s5, 7")
    a("s_mul_i32 s14, s3, 3072")
    a(f"s_add_u32 s14, s14, {L_RING}")
    a("s_lshl_b32 s15, s3, 10")
    a("s_mov_b32 s16, s14")
    a(f"s_mov_b32 s{R_X+2}, {2048*512*2}")
    a(f"s_mov_b32 s{R_X+3}, 0x20000")
    a(f"s_mov_b32 s{R_WQ+2}, {512*1536*2}")
    a(f"s_mov_b32 s{R_WQ+3}, 0x20000")
    a("s_cmp_ge_u32 s3, 8")
    a("s_waitcnt lgkmcnt(0)")
    a(f"s_cbranch_scc1 {L}_a_nopro")
    a.label(f"{L}_a_pro")
    a("s_mov_b32 m0, s15")
    a("s_lshl_b32 s8, s11, 7")
    a("s_add_u32 s8, s8, s12")
    a(f"s_mul_i32 s9, s11, {64*3072}")
    a(f"buffer_load_dwordx4 v{V_DX}, {sr(R_X)}, s8 offen lds")
    a("s_mov_b32 m0, s16")
    a("s_add_u32 s9, s9, s13")
    a("s_add_u32 s11, s11, 1")
    for g in range(3):
        a(f"buffer_load_dwordx4 v{V_DW}, {sr(R_WQ)}, s9 offen offset:{1024*g} lds")
    a("s_and_b32 s11, s11, 7")
    a("s_add_u32 s16, s16, 24576")
    a("s_add_u32 s15, s15, 8192")
    a(f"s_cmp_lt_u32 s15, {8192 * pro}")
    a(f"s_cbranch_scc1 {L}_a_pro")
    a.label(f"{L}_a_nopro")
    for r, ka in ((R_WS, KA_WS), (R_DBG, KA_DBG), (R_WG, KA_WG), (R_WU, KA_WU), (R_WD, KA_WD), (R_WO, KA_WO), (R_OUT, KA_OUT)):
        a(f"s_load_dwordx2 s[{r}:{r+1}], s[0:1], {ka}")
    a("s_memrealtime s[68:69]")
    for r, n in ((R_WS, WS_SIZE), (R_DBG, 256), (R_WG, 512*1376*2), (R_WD, 1376*512*2), (R_WO, 512*512*2), (R_OUT, 2048*512*2)):
        a(f"s_mov_b32 s{r+2}, {n}")
        a(f"s_mov_b32 s{r+3}, 0x20000")
    a("v_lshlrev_b32 v2, 4, v1")
    a("s_and_b32 s17, s3, 1")
    a("s_lshr_b32 s18, s3, 1")
    a("s_xor_b32 s19, s17, s18")
    a("s_and_b32 s19, s19, 1")
    a("s_lshl_b32 s19, s19, 1")
    a(f"v_and_b32 v{T}, 31, v1")
    a(f"v_lshrrev_b32 v{T+1}, 5, v1")
    a(f"v_bfe_u32 v{T+2}, v1, 1, 3")
    a(f"v_xor_b32 v{T+2}, v{T+2}, v{T+1}")
    a(f"v_lshlrev_b32 v{T+3}, 7, v{T}")
    a(f"v_lshl_add_u32 v3, v{T+2}, 4, v{T+3}")
    a("s_lshl_b32 s20, s17, 12")
    a("s_lshl_b32 s21, s19, 5")
    a("s_or_b32 s21, s20, s21")
    a(f"v_xor_b32 v{V_AX}, s21, v3")
    for q in range(1, 4):
        a(f"v_xor_b32 v{V_AX+q}, {32*q}, v{V_AX}")
    a("s_lshl_b32 s21, s18, 5")
    a("s_lshl_b32 s22, s18, 6")
    a(f"s_add_u32 s22, s22, {32768 - 256}")
    a("s_cmp_lt_u32 s3, 8")
    a("s_cselect_b32 s21, s21, s22")
    a("s_cselect_b32 s22, 8192, 32")
    a("s_cselect_b32 s71, 2, 1")
    a("s_lshl_b32 s71, s71, 13")
    a("s_mov_b32 s72, 2")
    a("s_mov_b32 s23, 0")
    a("s_or_b32 s21, s20, s21")
    a(f"v_xor_b32 v{V_NX}, s21, v3")
    a(f"v_xor_b32 v{V_NX+1}, s22, v{V_NX}")
    a("s_lshl_b32 s21, s18, 8")
    a(f"s_add_u32 s21, s21, {L_XCS}")
    a(f"v_lshl_add_u32 v{E_CR}, v{T}, 3, s21")
    a("s_lshl_b32 s21, s17, 2")
    a(f"v_add_u32 v{E_CW}, s21, v{E_CR}")
    a("s_lshl_b32 s21, s17, 9")
    a(f"s_add_u32 s21, s21, {L_XST}")
    a(f"v_lshl_add_u32 v{E_SR}, v{T}, 4, s21")
    a("s_and_b32 s20, s18, 1")
    a("s_lshl_b32 s21, s20, 3")
    a(f"v_add_u32 v{E_SW}, s21, v{E_SR}")
    a(f"s_mov_b32 s21, {L_MISC}")
    a(f"v_lshl_add_u32 v6, v{T}, 2, s21")
    a(f"v_mov_b32 v{E_Z}, 0")
    a(f"v_bfe_u32 v{T+4}, v1, 4, 1")
    a(f"v_and_b32 v{T+3}, 3, v1")
    a(f"v_lshlrev_b32 v{T+5}, 3, v{T+3}")
    a(f"v_lshl_add_u32 v{T+5}, v{T+4}, 5, v{T+5}")
    a(f"v_bfe_u32 v{T+6}, v1, 2, 2")
    a(f"v_mul_u32_u24 v{T+2}, 3072, v{T+1}")
    a(f"v_lshl_add_u32 v{T+2}, v{T+6}, 7, v{T+2}")
    a(f"v_bfe_u32 v{T+3}, v1, 3, 1")
    a(f"v_xor_b32 v{T+3}, s20, v{T+3}")
    a(f"v_lshl_add_u32 v{T+2}, v{T+3}, 6, v{T+2}")
    a(f"v_add_u32 v{T+2}, v{T+2}, v{T+5}")
    a("s_lshr_b32 s22, s18, 1")
    a("s_lshl_b32 s22, s22, 10")
    a(f"s_sub_u32 s22, {L_RING + 2048}, s22")
    for q in range(4):
        a(f"s_xor_b32 s21, s19, {q}")
        a("s_mul_i32 s21, s21, 6144")
        a("s_add_u32 s21, s21, s22")
        a(f"v_add_u32 v{V_AW+q}, s21, v{T+2}")
        a(f"v_add_u32 v{V_AW+4+q}, 49152, v{V_AW+q}")
    a("s_lshl_b32 s21, s3, 11")
    a(f"s_add_u32 s21, s21, {L_XVT}")
    a(f"v_lshlrev_b32 v{E_VW}, 6, v{T}")
    a(f"v_lshl_add_u32 v{E_VW}, v{T+1}, 3, v{E_VW}")
    a(f"v_add_u32 v{E_VW}, s21, v{E_VW}")
    a(f"v_lshl_add_u32 v{E_VR}, v{T+1}, 3, v{T+6}")
    a(f"v_lshl_add_u32 v{E_VR}, v{E_VR}, 6, v{T+5}")
    a(f"v_add_u32 v{E_VR}, s21, v{E_VR}")
    a(f"v_mul_u32_u24 v{E_VS}, {QKV_HEAD}, v{T+4}")
    a(f"v_lshl_add_u32 v{E_VS}, v{T+1}, 9, v{E_VS}")
    a(f"v_and_b32 v{T+3}, 15, v1")
    a(f"v_lshl_add_u32 v{E_VS}, v{T+3}, 4, v{E_VS}")
    a("s_lshl_b32 s73, s4, 1")
    a("s_add_u32 s73, s73, s17")
    a(f"s_mul_i32 s73, s73, {QKV_TILE}")
    a("s_lshl_b32 s21, s5, 1")
    a("s_add_u32 s21, s21, s20")
    a(f"s_mul_i32 s21, s21, {2*QKV_HEAD}")
    a("s_add_u32 s73, s73, s21")
    a("s_cmp_ge_u32 s3, 8")
    a(f"s_cselect_b32 s75, 0x{f2u(CQ):08x}, 1.0")
    a("s_cselect_b32 s21, 2048, 0")
    a("s_add_u32 s73, s73, s21")
    a(f"s_add_u32 s74, s73, {QKV_HEAD}")
    a(f"v_bfe_u32 v{T+3}, v1, 2, 1")
    a(f"v_cmp_eq_u32 vcc, v{T+3}, v{T+4}")
    a(f"v_mov_b32 v{T+3}, 0x3f803f80")
    a(f"v_mov_b32 v{T+4}, -1")
    for i in range(4):
        a(f"v_cndmask_b32 v{V_SEL+i}, 0, v{T+3}, vcc")
    for i in range(V_S1, V_S1 + 12, 2):
        a(f"v_mov_b64 {vr(i,2)}, 0")
    for i in range(0, 16, 2):
        a(f"v_mov_b64 {vr(V_ACC+i,2)}, 0")
    a("s_and_b32 s7, s3, 3")
    a("s_mul_i32 s60, s5, 11")
    a("s_min_u32 s60, s60, 75")
    a("s_lshl_b32 s21, s60, 5")
    a(f"s_mul_i32 s22, s20, {8*2752}")
    a("s_add_u32 s22, s22, s21")
    a("s_movk_i32 s21, 2752")
    for i in range(3):
        a(f"v_add_u32 v{T+10}, {64*i}, v1")
        a(f"v_mul_u32_u24 v{T+8}, 745, v{T+10}")
        a(f"v_lshrrev_b32 v{T+8}, 14, v{T+8}")
        a(f"v_mul_u32_u24 v{T+9}, 22, v{T+8}")
        a(f"v_sub_u32 v{T+9}, v{T+10}, v{T+9}")
        a(f"v_lshl_add_u32 v{T+9}, v{T+9}, 4, s22")
        a(f"v_mad_u32_u24 v{F_D+i}, v{T+8}, s21, v{T+9}")
        if i:
            a(f"v_subrev_u32 v{F_D+i}, {1024*i}, v{F_D+i}")
    a("s_mul_i32 s21, s7, 3")
    a("s_add_u32 s60, s60, s21")
    a(f"s_mul_i32 s61, s20, {8*352}")
    a(f"s_mul_i32 s21, s17, {FR_UP}")
    a("s_add_u32 s61, s61, s21")
    a(f"s_add_u32 s61, s61, {L_FR}")
    a(f"s_add_u32 s62, s61, {5 * FR_SLOT}")
    if fpre < 8:
        a("s_lshr_b32 s21, s3, 2")
        a("s_mul_i32 s21, s21, s21")
    else:
        a("s_mov_b32 s21, 0")
    a(f"s_mul_i32 s64, s21, {FR_SLOT}")
    a("s_add_u32 s64, s64, s61")
    a("s_lshl_b32 s22, s10, 2")
    a("s_add_u32 s21, s21, s22")
    a("s_and_b32 s21, s21, 31")
    a(f"s_mul_i32 s63, s21, {16*2752}")
    if pf:
        a("s_lshr_b32 s21, s2, 3")
        a("s_lshl_b32 s21, s21, 2")
        a("s_add_u32 s21, s21, s18")
        a(f"s_mul_i32 s21, s21, {4*2752}")
        a("s_and_b32 s22, s2, 4")
        a(f"s_mul_i32 s22, s22, {1408//4}")
        a("s_add_u32 s21, s21, s22")
        a("v_lshrrev_b32 v150, 4, v1")
        a("v_mul_u32_u24 v150, 2752, v150")
        a("v_and_b32 v151, 15, v1")
        a("v_min_u32 v151, 11, v151")
        a("v_lshl_add_u32 v150, v151, 7, v150")
        a("v_add_u32 v150, s21, v150")
    a("s_mov_b32 s66, -1")
    a("s_mov_b32 s67, 0xffff")
    a("s_bfe_u32 s70, s2, 0x30002")
    a(f"s_mul_i32 s70, s70, {32 * fstride}")
    a(f"s_add_u32 s70, s70, {WS_FLAG}")
    a(f"v_mul_u32_u24 v22, {fstride}, v{T}")
    a("v_mov_b32 v23, 0")
    a("s_mov_b64 vcc, 0")
    a("s_cmp_eq_u32 s17, 1")
    a("s_waitcnt lgkmcnt(0)")
    a(f"s_cselect_b32 s{R_WG}, s{R_WU}, s{R_WG}")
    a(f"s_cselect_b32 s{R_WG+1}, s{R_WU+1}, s{R_WG+1}")
    a("s_cmp_lt_u32 s3, 8")
    a(f"s_cbranch_scc1 {L}_a_nopois")
    a("s_mov_b64 vcc, -1")
    for i in range(5, 8):
        a(f"v_mov_b32 v{T+i}, -1")
    a("s_lshl_b32 s20, s4, 1")
    a("s_add_u32 s20, s20, s17")
    a(f"s_mul_i32 s20, s20, {AF_KSTEPS}")
    a("s_lshl_b32 s21, s5, 2")
    a("s_add_u32 s20, s20, s21")
    a("s_and_b32 s21, s3, 2")
    a("s_add_u32 s20, s20, s21")
    a("s_lshl_b32 s20, s20, 10")
    a(f"s_add_u32 s20, s20, {WS_AF}")
    a(f"buffer_store_dwordx4 {vr(T+4,4)}, v2, {sr(R_WS)}, s20 offen sc1")
    a(f"buffer_store_dwordx4 {vr(T+4,4)}, v2, {sr(R_WS)}, s20 offen offset:1024 sc1")
    a("s_lshl_b32 s20, s2, 4")
    a("s_add_u32 s20, s20, s3")
    a("s_cmp_lg_u32 s20, 8")
    a(f"s_cbranch_scc1 {L}_a_nopois")
    a("s_or_b32 s68, s68, 1")
    a(f"v_mov_b32 v{T+8}, s68")
    a("s_mov_b64 exec, 1")
    a(f"buffer_store_dword v{T+8}, v{E_Z}, {sr(R_DBG)}, 0 offen sc1")
    a("s_mov_b64 exec, -1")
    a.label(f"{L}_a_nopois")

    def reads_a(c, qs):
        b = c % 2
        for q in qs:
            a(f"ds_read_b128 {vr(V_XB[b]+4*q,4)}, v{V_AX+q} offset:{8192*c}")
            for e in range(2):
                a(f"ds_read_b64_tr_b16 {vr(V_WB[b]+4*q+2*e,2)}, v{V_AW+q+(4 if c & 2 else 0)} offset:{24576*(c&1) + 512*e}")

    def mm_a(b, q):
        a(f"v_mfma_f32_32x32x16_bf16 {vr(V_ACC,16)}, {vr(V_WB[b]+4*q,4)}, {vr(V_XB[b]+4*q,4)}, {vr(V_ACC,16)}")

    def cs_a(b, q):
        a(f"v_mfma_f32_16x16x32_bf16 {vr(V_CS,4)}, {vr(V_SEL,4)}, {vr(V_WB[b]+4*q,4)}, {vr(V_CS,4)}")

    def stat_a(b):
        for q in range(2):
            a(f"v_mfma_f32_16x16x32_bf16 {vr(V_S1,4)}, {vr(V_SEL,4)}, {vr(V_XB[b]+4*q,4)}, {vr(V_S1,4)}")
        for d in range(8):
            a(f"v_dot2c_f32_bf16 v{V_S2+d%2}, v{V_XB[b]+d}, v{V_XB[b]+d}")

    def dma_blk(b):
        a("s_mov_b32 m0, s15")
        a("s_lshl_b32 s8, s11, 7")
        a("s_add_u32 s8, s8, s12")
        a(f"s_mul_i32 s9, s11, {64*3072}")
        a(f"buffer_load_dwordx4 v{V_DX}, {sr(R_X)}, s8 offen lds")
        a(f"s_add_u32 m0, s14, {24576 * (b & 3)}")
        a("s_add_u32 s9, s9, s13")
        if b < 7:
            a("s_add_u32 s11, s11, 1")
        for g in range(3):
            a(f"buffer_load_dwordx4 v{V_DW}, {sr(R_WQ)}, s9 offen offset:{1024*g} lds")
        if b < 7:
            a("s_and_b32 s11, s11, 7")
            a("s_add_u32 s15, s15, 8192")

    def dma_fpre(r):
        a(f"s_add_u32 m0, s64, {2 * FR_SLOT * r}")
        a(f"s_add_u32 s8, s63, {32 * 2752 * r}")
        a(f"buffer_load_dwordx4 v{F_D}, {sr(R_WG)}, s8 offen lds")
        a(f"buffer_load_dwordx4 v{F_D+1}, {sr(R_WG)}, s8 offen offset:1024 lds")
        a("s_mov_b64 exec, s[66:67]")
        a(f"buffer_load_dwordx4 v{F_D+2}, {sr(R_WG)}, s8 offen offset:2048 lds")
        a("s_mov_b64 exec, -1")

    allow = [4 * (pro - 1), 8, 8, 8, 8, 8, 4, 3 if fpre == 6 else 0]
    if pf:
        allow = [v + (1 if c > pf else 0) for c, v in enumerate(allow)]
    a(f"s_waitcnt vmcnt({allow[0]})")
    a("s_barrier")
    stamp(1)
    reads_a(0, range(4))
    if pro == 3:
        a(f"s_cbranch_vccnz {L}_a_e0")
        dma_blk(3)
        a.label(f"{L}_a_e0")
    for c in range(1, 8):
        p = (c - 1) % 2
        has = c <= 4 or c >= fpre or c == pf
        a("s_waitcnt lgkmcnt(0)")
        mm_a(p, 0)
        cs_a(p, 0)
        a(f"s_waitcnt vmcnt({allow[c]})")
        a("s_barrier")
        mm_a(p, 1)
        reads_a(c, [0, 1])
        cs_a(p, 1)
        reads_a(c, [2, 3])
        mm_a(p, 2)
        a(f"s_cbranch_vccz {L}_a_d{c}")
        stat_a(p)
        if has:
            a(f"s_branch {L}_a_e{c}")
        a.label(f"{L}_a_d{c}")
        if c <= 4:
            dma_blk(c + 3)
        elif c >= fpre:
            for r in ([c - 6] if fpre == 6 else [0, 1]):
                dma_fpre(r)
        if c == pf:
            a(f"buffer_load_dword v151, v150, {sr(R_WG)}, 0 offen")
        if has:
            a.label(f"{L}_a_e{c}")
        mm_a(p, 3)
    a(f"buffer_load_dword v7, v{E_Z}, {sr(R_DBG)}, 0 offen sc1")
    a("s_waitcnt lgkmcnt(0)")
    stamp(2)
    cs_a(1, 0)
    cs_a(1, 1)
    a(f"s_cbranch_vccz {L}_a_nost")
    a("s_setprio 2")
    stat_a(1)
    a("s_nop 2")
    a(f"v_add_f32 v{V_S2}, v{V_S2}, v{V_S2+1}")
    a(f"v_mov_b32 v{V_S2+1}, v{V_S2}")
    a(f"ds_write_b32 v6, v{E_Z}")
    a("s_nop 0")
    a(f"v_permlane32_swap_b32 v{V_S2+1}, v{V_S2}")
    a("s_nop 0")
    a(f"v_add_f32 v{V_S1+1}, v{V_S2}, v{V_S2+1}")
    a(f"ds_write_b64 v{E_SW}, {vr(V_S1,2)}")
    a("s_setprio 0")
    a.label(f"{L}_a_nost")
    mm_a(1, 0)
    a("s_nop 6")
    a(f"ds_write_b32 v{E_CW}, v{V_CS}")
    mm_a(1, 1)
    a("s_waitcnt lgkmcnt(0)")
    a("s_barrier")
    XB = V_XB[0]
    a(f"ds_read_b128 {vr(XB,4)}, v{E_SR}")
    a(f"ds_read_b64 {vr(V_CS,2)}, v{E_CR}")
    mm_a(1, 2)
    V_M = V_WB[0]
    V_MEAN, V_VAR, V_RS = 34, 35, 33
    a("v_cmp_gt_u32 vcc, 32, v1")
    a(f"v_mov_b64 {vr(V_M+2,2)}, 0")
    a("s_waitcnt lgkmcnt(0)")
    a(f"v_add_f32 v{XB}, v{XB}, v{XB+2}")
    a(f"v_add_f32 v{XB+1}, v{XB+1}, v{XB+3}")
    c = V_CS
    a(f"v_add_f32 v{c+2}, v{c}, v{c+1}")
    a(f"v_mul_f32 v{V_MEAN}, 0xbb000000, v{XB}")
    a(f"v_cvt_pk_bf16_f32 v{c}, v{c+2}, v{c+2}")
    a(f"v_cvt_pk_bf16_f32 v{T+7}, v{V_MEAN}, v{V_MEAN}")
    a(f"v_and_b32 v{c+3}, 0xffff0000, v{c}")
    a(f"v_and_b32 v{T+7}, 0xffff0000, v{T+7}")
    mm_a(1, 3)
    a(f"v_sub_f32 v{c+2}, v{c+2}, v{c+3}")
    a(f"v_sub_f32 v{T+8}, v{V_MEAN}, v{T+7}")
    a(f"v_cvt_pk_bf16_f32 v{c+1}, v{c+2}, v{c+2}")
    a(f"v_cvt_pk_bf16_f32 v{T+7}, v{T+7}, v{T+8}")
    a(f"v_mov_b64 {vr(c+2,2)}, 0")
    a(f"v_cndmask_b32 v{V_M}, 0, v{T+7}, vcc")
    a(f"v_cndmask_b32 v{V_M+1}, 0, v{T+7}, vcc")
    a(f"v_mul_f32 v{V_VAR}, 0x3b000000, v{XB+1}")
    a(f"v_fma_f32 v{V_VAR}, -v{V_MEAN}, v{V_MEAN}, v{V_VAR}")
    a(f"v_mfma_f32_32x32x16_bf16 {vr(V_ACC,16)}, {vr(c,4)}, {vr(V_M,4)}, {vr(V_ACC,16)}")
    a(f"v_max_f32 v{V_VAR}, 0, v{V_VAR}")
    a(f"v_add_f32 v{V_VAR}, 0x{f2u(1e-5):08x}, v{V_VAR}")
    a(f"v_rsq_f32 v{V_RS}, v{V_VAR}")
    a("s_cmp_ge_u32 s3, 4")
    a(f"v_mul_f32 v{T+8}, s75, v{V_RS}")
    a(f"v_mov_b32 v32, v{V_RS}")
    a(f"v_mov_b32 v{T+9}, v{T+8}")
    a(f"v_mul_f32 v{V_MEAN}, v{V_MEAN}, v{V_RS}")
    a(f"v_mov_b32 v{V_VAR}, v{V_MEAN}")
    a("s_nop 2")
    P = V_XB[1]
    for r in range(0, 16, 2):
        a(f"v_pk_mul_f32 {vr(V_ACC+r,2)}, {vr(V_ACC+r,2)}, {vr(T+8,2)}")
    for r in range(8):
        a(f"v_cvt_pk_bf16_f32 v{P+r}, v{V_ACC+2*r}, v{V_ACC+2*r+1}")
    a(f"s_cbranch_scc1 {L}_a_qk")
    for g in range(4):
        a(f"ds_write_b64 v{E_VW}, {vr(P+2*g,2)} offset:{16*g}")
    for q in range(4):
        a(f"ds_read_b64_tr_b16 {vr(P+8+2*q,2)}, v{E_VR} offset:{1024*(q>>1) + 256*(q&1)}")
    a("s_waitcnt lgkmcnt(0)")
    a(f"buffer_store_dwordx4 {vr(P+8,4)}, v{E_VS}, {sr(R_WS)}, s73 offen offset:1024 sc1")
    a(f"buffer_store_dwordx4 {vr(P+12,4)}, v{E_VS}, {sr(R_WS)}, s73 offen offset:1280 sc1")
    a(f"s_branch {L}_a_norm")
    a.label(f"{L}_a_qk")
    a(f"buffer_store_dwordx4 {vr(P,4)}, v2, {sr(R_WS)}, s73 offen sc1")
    a(f"buffer_store_dwordx4 {vr(P+4,4)}, v2, {sr(R_WS)}, s74 offen sc1")
    if early:
        a("s_cmp_lg_u32 s3, 7")
        a(f"s_cbranch_scc1 {L}_a_norm")
        a(f"buffer_load_dword v23, v22, {sr(R_WS)}, s70 offen sc1")
    a.label(f"{L}_a_norm")
    stamp(3)
    N0, N1 = V_XB[0], V_WB[1]
    a.label(f"{L}_a_nl")
    a(f"ds_read_b128 {vr(N0,4)}, v{V_NX}")
    a(f"ds_read_b128 {vr(N0+4,4)}, v{V_NX+1}")
    for i in range(2):
        a(f"s_waitcnt lgkmcnt({1-i})")
        for d in range(4):
            a(f"v_lshlrev_b32 v{N1+2*d}, 16, v{N0+4*i+d}")
            a(f"v_and_b32 v{N1+2*d+1}, 0xffff0000, v{N0+4*i+d}")
        for d in range(4):
            a(f"v_pk_fma_f32 {vr(N1+2*d,2)}, {vr(N1+2*d,2)}, v[32:33], v[34:35]")
        for d in range(4):
            a(f"v_cvt_pk_bf16_f32 v{N0+8+4*i+d}, v{N1+2*d}, v{N1+2*d+1}")
        a(f"ds_write_b128 v{V_NX+i}, {vr(N0+8+4*i,4)}")
        a(f"v_add_u32 v{V_NX+i}, s71, v{V_NX+i}")
    a("s_sub_u32 s72, s72, 1")
    a("s_cmp_lg_u32 s72, 0")
    a(f"s_cbranch_scc1 {L}_a_nl")
    a("s_cmp_lg_u32 s23, 0")
    a(f"s_cbranch_scc1 {L}_ffn2")

    def dma_f():
        return ["s_mov_b32 m0, s64", f"s_add_u32 s64, s64, {FR_SLOT}",
                f"buffer_load_dwordx4 v{F_D}, {sr(R_WG)}, s63 offen lds",
                f"buffer_load_dwordx4 v{F_D+1}, {sr(R_WG)}, s63 offen offset:1024 lds",
                "s_mov_b64 exec, s[66:67]",
                f"buffer_load_dwordx4 v{F_D+2}, {sr(R_WG)}, s63 offen offset:2048 lds",
                "s_mov_b64 exec, -1", f"s_add_u32 s63, s63, {16*2752}",
                f"s_cmp_eq_u32 s63, {512*2752}", "s_cselect_b32 s63, 0, s63",
                "s_cmp_eq_u32 s64, s62", "s_cselect_b32 s64, s61, s64"]

    stamp(4)
    a("s_waitcnt vmcnt(0) lgkmcnt(0)")
    stamp(5)
    a("v_readfirstlane_b32 s6, v7")
    a("s_barrier")
    a(f"s_mov_b32 s22, {SPIN_MAX}")
    a.label(f"{L}_tag")
    a("s_cmp_lg_u32 s6, 0")
    a(f"s_cbranch_scc1 {L}_tagok")
    a(f"buffer_load_dword v7, v{E_Z}, {sr(R_DBG)}, 0 offen sc1")
    a("s_sub_u32 s22, s22, 1")
    a("s_waitcnt vmcnt(0)")
    a("v_readfirstlane_b32 s6, v7")
    a("s_cmp_lg_u32 s22, 0")
    a(f"s_cbranch_scc1 {L}_tag")
    a.label(f"{L}_tagok")
    a("s_cmp_ge_u32 s3, 8")
    a(f"s_cbranch_scc1 {L}_ffn")
    a("s_cmp_lg_u32 s3, 0")
    a(f"s_cbranch_scc1 {L}_att")
    a("s_lshl_b32 s8, s5, 5")
    a("s_add_u32 s8, s8, s4")
    a(f"s_mul_i32 s8, s8, {fstride}")
    a(f"s_add_u32 s8, s8, {WS_FLAG}")
    a("s_mov_b64 exec, 1")
    a(f"buffer_store_dword v7, v{E_Z}, {sr(R_WS)}, s8 offen sc1")
    a("s_mov_b64 exec, -1")

    def poll_line(name, sbase, vtmp, n=32, poll_sleep=poll_sleep):
        a(f"v_and_b32 v{vtmp}, {n-1}, v1")
        a(f"v_mul_u32_u24 v{vtmp}, {fstride}, v{vtmp}")
        a(f"s_mov_b32 s22, {SPIN_MAX}")
        a.label(f"{name}")
        a(f"buffer_load_dword v{vtmp+1}, v{vtmp}, {sr(R_WS)}, {sbase} offen sc1")
        a("s_sub_u32 s22, s22, 1")
        a("s_waitcnt vmcnt(0)")
        a(f"v_cmp_ne_u32 vcc, s6, v{vtmp+1}")
        a(f"s_cbranch_vccz {name}_ok")
        a(f"s_sleep {poll_sleep}")
        a("s_cmp_lg_u32 s22, 0")
        a(f"s_cbranch_scc1 {name}")
        a.label(f"{name}_ok")

    a.label(f"{L}_att")
    SA, SB, CA, CB, OA, OB, QA, QB = 8, 24, 40, 56, 72, 88, 104, 108
    KB = [112, 116]
    VB = [120, 128]
    V_AD, V_K, V_C, V_PW, V_PR, V_IX = 136, 137, 138, 139, 140, 141

    def pv(O, V, P):
        return f"v_smfmac_f32_32x32x32_bf16 {vr(O,16)}, {vr(V,4)}, {vr(P,8)}, v{V_IX}"

    TT = 144
    a("v_cmp_ne_u32 vcc, s6, v23")
    a("s_mov_b32 s23, s70")
    a("s_and_b32 s60, s2, 31")
    a("s_lshr_b32 s61, s2, 5")
    a("s_and_b32 s62, s3, 3")
    a("s_lshr_b32 s63, s3, 2")
    a("s_mov_b32 s64, 1")
    a("s_mov_b32 s66, 0x0000ffff")
    a("s_mov_b32 s67, 0x0000ffff")
    a("s_lshl_b32 s71, s61, 3")
    a("s_lshl_b32 s8, s62, 1")
    a("s_add_u32 s71, s71, s8")
    a(f"s_mul_i32 s69, s60, {QKV_HEAD}")
    a(f"s_mul_i32 s8, s71, {QKV_TILE}")
    a("s_add_u32 s68, s69, s8")
    a("s_add_u32 s68, s68, 2048")
    a(f"s_mul_i32 s8, s63, {32 * QKV_TILE}")
    a("s_add_u32 s70, s69, s8")
    a(f"s_mul_i32 s9, s61, {4 * QKV_TILE}")
    a("s_add_u32 s69, s69, s9")
    a("s_lshr_b32 s8, s62, 1")
    a(f"s_mul_i32 s8, s8, {QKV_TILE}")
    a("s_and_b32 s10, s62, 1")
    a("s_lshl_b32 s10, s10, 10")
    a("s_add_u32 s8, s8, s10")
    a("s_add_u32 s12, s70, s8")
    a(f"s_add_u32 s13, s12, {32 * QKV_TILE}")
    a("s_add_u32 s72, s12, s9")
    a(f"s_mul_i32 s14, s63, {KV_SZ}")
    a(f"s_add_u32 s14, s14, {L_KV}")
    a(f"s_add_u32 s15, s14, {KV_SZ}")
    a("s_mov_b32 s75, s14")
    a("s_lshl_b32 s8, s62, 10")
    a("s_add_u32 s16, s14, s8")
    a("s_add_u32 s17, s15, s8")
    a("s_mov_b32 s74, s16")
    a("s_lshl_b32 s8, s3, 2")
    a(f"s_add_u32 s8, s8, {L_MISC}")
    a(f"v_mov_b32 v{V_PW}, s8")
    a("s_and_b32 s8, s8, 0xfffffff0")
    a(f"v_and_b32 v{V_PR}, 3, v1")
    a(f"v_lshl_add_u32 v{V_PR}, v{V_PR}, 2, s8")
    a(f"v_mov_b32 v{V_K}, 1")
    a("s_mov_b32 s73, 0")

    def att_init():
        a(f"v_mov_b32 v{V_IX}, 0xdddddddd")
        if ones2:
            a(f"v_and_b32 v{VB[0]}, 27, v1")
            a(f"v_cmp_eq_u32 vcc, 16, v{VB[0]}")
            a(f"v_mov_b32 v{VB[0]+1}, 0x3f803f80")
            a(f"v_cndmask_b32 v{VB[0]}, 0, v{VB[0]+1}, vcc")
            a(f"v_mov_b32 v{VB[0]+1}, v{VB[0]}")
        else:
            a(f"v_mov_b32 v{VB[0]}, 0x3f803f80")
            a(f"v_mov_b32 v{VB[0]+1}, 0x3f803f80")
        for i in range(2, 16, 2):
            a(f"v_mov_b64 {vr(VB[0]+i,2)}, {vr(VB[0],2)}")
        for i in range(0, 32, 2):
            a(f"v_mov_b64 {vr(OA+i,2)}, 0")

    def kv_dma():
        return ["s_mov_b32 m0, s74", "s_add_u32 s74, s74, 4096",
                f"buffer_load_dwordx4 v2, {sr(R_WS)}, s72 offen sc1 lds",
                "s_cmp_eq_u32 s74, s17", "s_cselect_b32 s74, s16, s74",
                f"s_add_u32 s72, s72, {2 * QKV_TILE}", "s_cmp_eq_u32 s72, s13", "s_cselect_b32 s72, s12, s72"]

    def kv_reads(p):
        return [f"ds_read_b128 {vr(KB[p],4)}, v{V_AD} offset:{2048*p}", "s_mov_b64 exec, s[66:67]",
                f"ds_read_b128 {vr(VB[p],4)}, v{V_AD} offset:{2048*p+1024}",
                f"ds_read_b128 {vr(VB[p]+4,4)}, v{V_AD} offset:{2048*p+1280}", "s_mov_b64 exec, -1"]

    def spin(name):
        a.label(f"{name}")
        a(f"ds_read_b32 v{V_C}, v{V_PR}")
        a("s_waitcnt lgkmcnt(0)")
        a(f"v_cmp_lt_u32 vcc, v{V_C}, v{V_K}")
        a(f"s_cbranch_vccnz {name}")

    def rowmax(S, dst):
        a(f"v_max3_f32 v{dst}, v{S}, v{S+1}, v{S+2}")
        for i in range(3, 15, 2):
            a(f"v_max3_f32 v{dst}, v{dst}, v{S+i}, v{S+i+1}")
        a(f"v_max_f32 v{dst}, v{dst}, v{S+15}")

    def crosshalf_max(r0, r1, t0, t1):
        a(f"v_mov_b32 v{t0}, v{r0}")
        a(f"v_mov_b32 v{t1}, v{r1}")
        a("s_nop 1")
        a(f"v_permlane32_swap_b32 v{t0}, v{r0}")
        a(f"v_permlane32_swap_b32 v{t1}, v{r1}")
        a("s_nop 1")
        a(f"v_max_f32 v{r0}, v{r0}, v{t0}")
        a(f"v_max_f32 v{r1}, v{r1}, v{t1}")

    a(f"v_mov_b32 v{TT+2}, {L_MISC + 96}")
    a(f"s_cbranch_vccz {L}_qpoll_ok")
    a("s_cmp_eq_u32 s3, 7")
    a(f"s_cbranch_scc1 {L}_qp7")
    a.label(f"{L}_qw")
    a("s_sleep 1")
    a(f"ds_read_b32 v{TT+3}, v{TT+2}")
    a("s_waitcnt lgkmcnt(0)")
    a(f"v_cmp_eq_u32 vcc, 0, v{TT+3}")
    a(f"s_cbranch_vccnz {L}_qw")
    a(f"s_branch {L}_qgo")
    a.label(f"{L}_qp7")
    if spoll:
        assert fstride == 4
        a(f"s_mov_b32 s22, {SPIN_MAX}")
        a(f"s_add_u32 s18, s{R_WS}, s23")
        a(f"s_addc_u32 s19, s{R_WS+1}, 0")
        for half in range(2):
            a.label(f"{L}_qs{half}")
            a(f"s_load_dwordx16 s[36:51], s[18:19], {64*half} glc")
            a("s_sub_u32 s22, s22, 1")
            a("s_mov_b32 s7, s6")
            a("s_waitcnt lgkmcnt(0)")
            for i in range(36, 52, 2):
                a(f"s_xor_b64 s[{i}:{i+1}], s[{i}:{i+1}], s[6:7]")
            for i in range(38, 52, 2):
                a(f"s_or_b64 s[36:37], s[36:37], s[{i}:{i+1}]")
            a(f"s_cbranch_scc0 {L}_qs{half}k")
            a("s_cmp_lg_u32 s22, 0")
            a(f"s_cbranch_scc1 {L}_qs{half}")
            a.label(f"{L}_qs{half}k")
        a.label(f"{L}_qpoll_ok")
    else:
        poll_line(f"{L}_qpoll", "s23", TT)
    a(f"ds_write_b32 v{TT+2}, v{V_K}")
    a.label(f"{L}_qgo")
    stamp(6)
    for l in kv_dma():
        a(l)
    a(f"buffer_load_dwordx4 {vr(QA,4)}, v2, {sr(R_WS)}, s68 offen sc1")
    a(f"buffer_load_dwordx4 {vr(QB,4)}, v2, {sr(R_WS)}, s68 offen offset:3072 sc1")
    a(f"buffer_load_dwordx4 {vr(TT,4)}, v2, {sr(R_WS)}, s69 offen sc1")
    for i in range(3):
        for l in kv_dma():
            a(l)
    att_init()
    a(f"v_add_u32 v{V_AD}, s75, v2")
    a("s_waitcnt vmcnt(6)")
    a(f"ds_write_b32 v{V_PW}, v{V_K}")
    a("s_waitcnt vmcnt(3)")
    a(f"v_mfma_f32_32x32x16_bf16 {vr(SA,16)}, {vr(TT,4)}, {vr(QA,4)}, 0")
    a(f"v_mfma_f32_32x32x16_bf16 {vr(SB,16)}, {vr(TT,4)}, {vr(QB,4)}, 0")
    spin(f"{L}_sp0")
    for l in kv_reads(0):
        a(l)
    a(f"v_add_u32 v{V_K}, 1, v{V_K}")
    a("s_nop 3")
    rowmax(SA, 4)
    rowmax(SB, 5)
    crosshalf_max(4, 5, TT + 4, TT + 5)
    off = M_OFFSET if not force_fallback else -200.0
    a(f"v_sub_f32 v{CA}, 0x{f2u(-off):08x}, v4")
    a(f"v_sub_f32 v{CB}, 0x{f2u(-off):08x}, v5")
    a(f"v_mov_b32 v{CA+1}, v{CA}")
    for i in range(2, 16, 2):
        a(f"v_mov_b64 {vr(CA+i,2)}, {vr(CA,2)}")
    a(f"v_mov_b32 v{CB+1}, v{CB}")
    a("s_waitcnt lgkmcnt(0)")
    a(f"v_mfma_f32_32x32x16_bf16 {vr(SA,16)}, {vr(KB[0],4)}, {vr(QA,4)}, {vr(CA,16)}")
    for i in range(2, 16, 2):
        a(f"v_mov_b64 {vr(CB+i,2)}, {vr(CB,2)}")
    for i in range(8, 16, 2):
        a(f"v_mov_b64 {vr(SB+i,2)}, 0")
    a("s_waitcnt vmcnt(2)")
    a(f"ds_write_b32 v{V_PW}, v{V_K}")
    stamp(7)
    a("s_setprio 1")
    a("s_cmp_eq_u32 s63, 0")
    a(f"s_cbranch_scc1 {L}_mid0")
    a(f"s_branch {L}_mid1")

    def phase(X, Y, OX, OY, pv1_V, qk_K, QY, CY, pv0_V, ins=None, lo=None, prev=None):
        qkY = f"v_mfma_f32_32x32x16_bf16 {vr(Y,16)}, {vr(qk_K,4)}, {vr(QY,4)}, {vr(CY,16)}"
        m = dict(zip(POS, (pv(OY, pv1_V, Y + 8), qkY, pv(OX, pv0_V, X))))
        assert POS[0] >= 2 and POS[2] >= 10 and 16 - POS[1] + 1 + (3 if hi is not None else 0) >= 12
        if hi is None and lo != prev:
            a(f"s_setprio {lo}")
        for i in range(16):
            for l in (ins or {}).get(i, []):
                if l.endswith(":"):
                    a.label(l[:-1])
                else:
                    a(l)
            if i in m:
                if hi is not None:
                    a(f"s_setprio {hi}")
                a(m[i])
                if hi is not None:
                    a(f"s_setprio {lo}")
            a(f"v_exp_f32 v{X+i}, v{X+i}")

    a.label(f"{L}_loop")
    for g, B in enumerate((base0, base1)):
        a.raw(".p2align 6")
        a.label(f"{L}_loop{g}")
        d = kv_dma()
        point = {
            1: ["s_add_u32 s75, s75, 4096", "s_cmp_eq_u32 s75, s15", "s_cselect_b32 s75, s14, s75"],
            2: ["s_waitcnt lgkmcnt(0)", f"v_cmp_lt_u32 vcc, v{V_C}, v{V_K}", f"s_cbranch_vccnz {L}_sp1{g}", f"{L}_sp1b{g}:"],
            3: [f"v_add_u32 v{V_AD}, s75, v2", "s_add_u32 s73, s73, 1", "s_cmp_ge_u32 s73, 13", f"s_cbranch_scc1 {L}_tail{g}"] + d[:3] + [f"{L}_tailb{g}:"],
            4: d[3:5] + [f"v_add_u32 v{V_K}, 1, v{V_K}"],
            6: d[5:],
            8: kv_reads(0),
            11: ["s_waitcnt vmcnt(2)", f"ds_write_b32 v{V_PW}, v{V_K}"],
        }
        phase(SA, SB, OA, OB, VB[0] + 4, KB[1], QB, CB, VB[1], point, B[0], B[3])
        phase(SB, SA, OB, OA, VB[1] + 4, KB[0], QA, CA, VB[1], {POS[1]: ["s_waitcnt lgkmcnt(0)"], 14: ["s_cmp_eq_u32 s73, 16"]}, B[1], B[0])
        a(f"s_cbranch_scc1 {L}_done")
        a.label(f"{L}_mid{g}")
        phase(SA, SB, OA, OB, VB[1] + 4, KB[0], QB, CB, VB[0], {8: kv_reads(1)}, B[2], B[1])
        phase(SB, SA, OB, OA, VB[0] + 4, KB[1], QA, CA, VB[0], {POS[1]: ["s_waitcnt lgkmcnt(0)"], 13: [f"ds_read_b32 v{V_C}, v{V_PR}"]}, B[3], B[2])
        a(f"s_branch {L}_loop{g}")
        spin(f"{L}_sp1{g}")
        a(f"s_branch {L}_sp1b{g}")
        a.label(f"{L}_tail{g}")
        a("s_waitcnt vmcnt(1)")
        a("s_cmp_eq_u32 s73, 13")
        a(f"s_cbranch_scc1 {L}_tailb{g}")
        a("s_waitcnt vmcnt(0)")
        a(f"s_branch {L}_tailb{g}")
    a.label(f"{L}_done")
    a("s_setprio 3")
    a("s_mul_i32 s8, s62, 3072")
    a("s_add_u32 s8, s8, 4096")
    a(pv(OB, VB[1] + 4, SB + 8))
    stamp(8)
    a("s_add_u32 s9, s8, s14")
    a(f"v_add_u32 v{TT}, s9, v2")
    a(f"s_sub_u32 s9, {2*L_KV + KV_SZ}, s14")
    a("s_add_u32 s9, s9, s8")
    a(f"v_add_u32 v{TT+1}, s9, v2")
    a(f"v_xor_b32 v{TT+2}, 16, v{V_PW}")
    a.label(f"{L}_fin")
    a(f"v_mov_b32 v{TT+3}, 0x7e800000")
    a("s_mov_b64 s[8:9], -1")
    for r in [OA + i for i in range(9)] + [OB + i for i in range(9)]:
        a(f"v_cmp_lt_f32 vcc, abs(v{r}), v{TT+3}")
        a("s_and_b64 s[8:9], s[8:9], vcc")
    a("s_cmp_eq_u64 s[8:9], -1")
    a("s_cselect_b32 s65, 1, 2")
    a("s_max_u32 s65, s65, s64")
    a(f"v_mov_b32 v{TT+3}, s65")
    a("s_cmp_eq_u32 s63, 0")
    a(f"s_cbranch_scc1 {L}_w0")
    a(f"ds_write_b128 v{TT}, {vr(OA,4)}")
    a(f"ds_write_b128 v{TT}, {vr(OA+4,4)} offset:1024")
    a(f"ds_write_b32 v{TT}, v{OA+8} offset:2048")
    a(f"ds_write_b32 v{V_PW}, v{TT+3} offset:32")
    for i in range(0, 10, 2):
        a(f"v_mov_b64 {vr(SB+i,2)}, {vr(OB+i,2)}")
    a(f"s_branch {L}_w1")
    a.label(f"{L}_w0")
    a(f"ds_write_b128 v{TT}, {vr(OB,4)}")
    a(f"ds_write_b128 v{TT}, {vr(OB+4,4)} offset:1024")
    a(f"ds_write_b32 v{TT}, v{OB+8} offset:2048")
    a(f"ds_write_b32 v{V_PW}, v{TT+3} offset:32")
    for i in range(0, 10, 2):
        a(f"v_mov_b64 {vr(SB+i,2)}, {vr(OA+i,2)}")
    a.label(f"{L}_w1")
    a("s_add_u32 s8, s71, s63")
    a(f"s_mul_i32 s8, s8, {AF_KSTEPS}")
    a("s_add_u32 s8, s8, s60")
    a("s_lshl_b32 s8, s8, 10")
    a(f"s_add_u32 s8, s8, {WS_AF}")
    a(f"s_branch {L}_xw")
    a.label(f"{L}_xs")
    a("s_sleep 2")
    a.label(f"{L}_xw")
    a(f"ds_read_b32 v{SA+9}, v{TT+2} offset:32")
    a(f"ds_read_b128 {vr(SA,4)}, v{TT+1}")
    a(f"ds_read_b128 {vr(SA+4,4)}, v{TT+1} offset:1024")
    a(f"ds_read_b32 v{SA+8}, v{TT+1} offset:2048")
    a("s_waitcnt lgkmcnt(0)")
    a(f"v_cmp_gt_u32 vcc, s64, v{SA+9}")
    a(f"s_cbranch_vccnz {L}_xs")
    a(f"v_readfirstlane_b32 s9, v{SA+9}")
    a("s_max_u32 s9, s9, s65")
    a("s_cmp_lg_u32 s9, s64")
    a(f"s_cbranch_scc1 {L}_fallback")
    a(f"v_add_f32 v{SB+8}, v{SB+8}, v{SA+8}")
    a(f"v_rcp_f32 v{SB+8}, v{SB+8}")
    for i in range(0, 8, 2):
        a(f"v_pk_add_f32 {vr(SB+i,2)}, {vr(SB+i,2)}, {vr(SA+i,2)}")
    for i in range(8):
        a(f"v_mul_f32 v{SB+i}, v{SB+i}, v{SB+8}")
    for i in range(4):
        a(f"v_cvt_pk_bf16_f32 v{SA+i}, v{SB+2*i}, v{SB+2*i+1}")
    a(f"buffer_store_dwordx4 {vr(SA,4)}, v2, {sr(R_WS)}, s8 offen sc1")
    if prof == 2:
        stamp(4)
    prof_end()
    a.label(f"{L}_end")
    a("s_endpgm")
    a.label(f"{L}_fallback")
    a("s_mov_b32 s64, 4")
    a("s_mov_b32 s72, s70")
    a("s_mov_b32 s73, 32")
    a("v_mov_b32 v4, 0xff800000")
    a("v_mov_b32 v5, 0xff800000")
    a.label(f"{L}_fb_loop")
    a(f"buffer_load_dwordx4 {vr(KB[0],4)}, v2, {sr(R_WS)}, s72 offen sc1")
    a("s_add_u32 s72, s72, 3072")
    a("s_waitcnt vmcnt(0)")
    a(f"v_mfma_f32_32x32x16_bf16 {vr(SA,16)}, {vr(KB[0],4)}, {vr(QA,4)}, 0")
    a(f"v_mfma_f32_32x32x16_bf16 {vr(SB,16)}, {vr(KB[0],4)}, {vr(QB,4)}, 0")
    a("s_nop 12")
    for i in range(0, 16, 2):
        a(f"v_max3_f32 v4, v4, v{SA+i}, v{SA+i+1}")
    for i in range(0, 16, 2):
        a(f"v_max3_f32 v5, v5, v{SB+i}, v{SB+i+1}")
    a("s_sub_u32 s73, s73, 1")
    a("s_cmp_lg_u32 s73, 0")
    a(f"s_cbranch_scc1 {L}_fb_loop")
    crosshalf_max(4, 5, TT + 4, TT + 5)
    a(f"v_mov_b32 v{TT+4}, 3")
    a(f"ds_write_b64 v{TT}, v[4:5] offset:2056")
    a(f"ds_write_b32 v{V_PW}, v{TT+4} offset:32")
    a.label(f"{L}_fb_w")
    a(f"ds_read_b32 v{TT+5}, v{TT+2} offset:32")
    a(f"ds_read_b64 {vr(TT+6,2)}, v{TT+1} offset:2056")
    a("s_waitcnt lgkmcnt(0)")
    a(f"v_cmp_gt_u32 vcc, 3, v{TT+5}")
    a(f"s_cbranch_vccnz {L}_fb_w")
    a(f"v_max_f32 v4, v4, v{TT+6}")
    a(f"v_max_f32 v5, v5, v{TT+7}")
    for i in range(16):
        a(f"v_sub_f32 v{CA+i}, 0, v4")
        a(f"v_sub_f32 v{CB+i}, 0, v5")
    for i in range(0, 32, 2):
        a(f"v_mov_b64 {vr(OA+i,2)}, 0")
    a("s_mov_b32 s72, s70")
    a("s_mov_b32 s73, 32")
    a.label(f"{L}_fb_2")
    a(f"buffer_load_dwordx4 {vr(KB[0],4)}, v2, {sr(R_WS)}, s72 offen sc1")
    a("s_mov_b64 exec, s[66:67]")
    a(f"buffer_load_dwordx4 {vr(VB[0],4)}, v2, {sr(R_WS)}, s72 offen offset:1024 sc1")
    a(f"buffer_load_dwordx4 {vr(VB[0]+4,4)}, v2, {sr(R_WS)}, s72 offen offset:1280 sc1")
    a("s_mov_b64 exec, -1")
    a("s_add_u32 s72, s72, 3072")
    a("s_waitcnt vmcnt(0)")
    a(f"v_mfma_f32_32x32x16_bf16 {vr(SA,16)}, {vr(KB[0],4)}, {vr(QA,4)}, {vr(CA,16)}")
    a(f"v_mfma_f32_32x32x16_bf16 {vr(SB,16)}, {vr(KB[0],4)}, {vr(QB,4)}, {vr(CB,16)}")
    a("s_nop 12")
    for i in range(32):
        a(f"v_exp_f32 v{SA+i}, v{SA+i}")
    a("s_nop 2")
    a(pv(OA, VB[0], SA))
    a(pv(OB, VB[0], SB))
    a(pv(OA, VB[0] + 4, SA + 8))
    a(pv(OB, VB[0] + 4, SB + 8))
    a("s_sub_u32 s73, s73, 1")
    a("s_cmp_lg_u32 s73, 0")
    a("s_nop 12")
    a(f"s_cbranch_scc1 {L}_fb_2")
    a(f"s_branch {L}_fin")

    a.label(f"{L}_ffn")
    ffn_start = len(a.lines)
    stamp(1)
    if "noffn" in dbg:
        prof_end()
        a("s_endpgm")
    if prio_ffn:
        a(f"s_setprio {prio_ffn}")
    a.label(f"{L}_f_pro")
    for l in dma_f():
        a(l)
    if fpre >= 8:
        a(f"s_cbranch_scc0 {L}_f_pro")
    a("s_mov_b32 s72, 2")
    a("s_mov_b32 s23, 1")
    a(f"s_branch {L}_a_nl")
    a.label(f"{L}_ffn2")
    F_AX = 8
    F_AW, F_CW, F_K, F_C, F_PW, F_PR = 12, 13, 14, 15, 16, 17
    FT = 18
    F_B = [28, 48]
    F_ACC = 68
    a("s_lshl_b32 s8, s7, 2")
    a(f"s_add_u32 s8, s8, {L_MISC + 64}")
    a(f"v_mov_b32 v{F_PW}, s8")
    a(f"v_mov_b32 v{F_K}, 1")
    a(f"v_mov_b32 v{F_AX}, v3")
    for q in range(1, 4):
        a(f"v_xor_b32 v{F_AX+q}, {32*q}, v3")
    a(f"v_lshrrev_b32 v{FT}, 5, v1")
    a(f"v_bfe_u32 v{FT+1}, v1, 2, 2")
    a(f"v_lshl_add_u32 v{FT}, v{FT}, 3, v{FT+1}")
    a(f"v_mul_u32_u24 v{FT}, 352, v{FT}")
    a(f"v_and_b32 v{FT+2}, 3, v1")
    a(f"v_lshl_add_u32 v{FT}, v{FT+2}, 3, v{FT}")
    a(f"v_bfe_u32 v{FT+1}, v1, 4, 1")
    a(f"v_mul_u32_u24 v{FT+1}, {FR_UP}, v{FT+1}")
    a("s_mul_i32 s8, s7, 96")
    a(f"s_add_u32 s8, s8, {L_FR}")
    a(f"v_add3_u32 v{F_AW}, v{FT}, v{FT+1}, s8")
    a(f"v_mov_b32 v{F_CW}, v{F_AW}")

    def reads_f(q):
        b = F_B[q % 2]
        r = [f"ds_read_b128 {vr(b+4*sx,4)}, v{F_AX+q} offset:{4096*sx}" for sx in range(2)]
        for u in range(3):
            for e in range(2):
                r.append(f"ds_read_b64_tr_b16 {vr(b+8+4*u+2*e,2)}, v{F_CW} offset:{4*e*352 + 32*u}")
        return r

    def mfma_f(q):
        b = F_B[q % 2]
        r = []
        for u in range(3):
            for sx in range(2):
                acc = F_ACC + 16 * (2 * u + sx)
                r.append(f"v_mfma_f32_32x32x16_bf16 {vr(acc,16)}, {vr(b+8+4*u,4)}, {vr(b+4*sx,4)}, {vr(acc,16)}")
        return r

    a(f"s_mov_b32 s8, {L_MISC + 64}")
    a(f"v_lshl_add_u32 v{F_PR}, v{FT+2}, 2, s8")
    for i in range(0, 96, 2):
        a(f"v_mov_b64 {vr(F_ACC+i,2)}, 0")
    a("s_waitcnt vmcnt(12) lgkmcnt(0)")
    a(f"ds_write_b32 v{F_PW}, v{F_K}")
    a.label(f"{L}_f_sp")
    a(f"ds_read_b32 v{F_C}, v{F_PR}")
    a("s_waitcnt lgkmcnt(0)")
    a(f"v_cmp_lt_u32 vcc, v{F_C}, v{F_K}")
    a(f"s_cbranch_vccnz {L}_f_sp")
    for l in reads_f(0):
        a(l)
    a(f"v_add_u32 v{F_AX}, 8192, v{F_AX}")
    a(f"v_mov_b32 v{F_K}, 2")
    a("s_waitcnt vmcnt(9) lgkmcnt(0)")
    a(f"ds_write_b32 v{F_PW}, v{F_K}")
    a(f"ds_read_b32 v{F_C}, v{F_PR}")
    a("s_mov_b32 s65, 0")
    a("s_mov_b32 s68, 0")
    a.label(f"{L}_f_loop")
    for q in range(4):
        m = mfma_f(q)
        qn = (q + 1) % 4
        r = reads_f(qn)
        d = dma_f()
        a(f"s_add_u32 s65, s65, {FR_SLOT}")
        a(f"s_cmp_eq_u32 s65, {5 * FR_SLOT}")
        a("s_cselect_b32 s65, 0, s65")
        a(m[0])
        a(f"v_add_u32 v{F_CW}, s65, v{F_AW}")
        a("s_waitcnt lgkmcnt(0)")
        a(f"v_cmp_lt_u32 vcc, v{F_C}, v{F_K}")
        a(f"s_cbranch_vccnz {L}_f_sp{q}")
        a.label(f"{L}_f_spb{q}")
        for l in r[:4]:
            a(l)
        a(m[1])
        for l in r[4:]:
            a(l)
        a(f"v_add_u32 v{F_AX+qn}, 8192, v{F_AX+qn}")
        a(m[2])
        a("s_add_u32 s68, s68, 1")
        a("s_cmp_ge_u32 s68, 28")
        a(f"s_cbranch_scc1 {L}_f_tl{q}")
        for l in d:
            a(l)
        a.label(f"{L}_f_tlb{q}")
        a(m[3])
        a(f"v_add_u32 v{F_K}, 1, v{F_K}")
        a("s_waitcnt vmcnt(9) lgkmcnt(0)")
        a(f"ds_write_b32 v{F_PW}, v{F_K}")
        a(m[4])
        a(m[5])
        a(f"ds_read_b32 v{F_C}, v{F_PR}")
    if pf2:
        a(f"s_cmp_eq_u32 s68, {pf2}")
        a(f"s_cbranch_scc1 {L}_f_pf")
    a("s_cmp_lt_u32 s68, 32")
    a(f"s_cbranch_scc1 {L}_f_loop")
    a(f"s_branch {L}_f_done")
    if pf2:
        a.label(f"{L}_f_pf")
        a("s_lshr_b32 s8, s2, 3")
        a("s_lshl_b32 s8, s8, 2")
        a("s_add_u32 s8, s8, s7")
        a(f"s_mul_i32 s9, s8, {86*128}")
        a("s_lshl_b32 s8, s8, 12")
        a(f"v_lshlrev_b32 v{FT}, 7, v1")
        a(f"buffer_load_dword v167, v{FT}, {sr(R_WD)}, s9 offen")
        a(f"s_add_u32 s9, s9, {54*128}")
        a("s_mov_b32 exec_hi, 0")
        a(f"buffer_load_dword v167, v{FT}, {sr(R_WD)}, s9 offen")
        a(f"buffer_load_dword v167, v{FT}, {sr(R_WO)}, s8 offen")
        a("s_mov_b32 exec_hi, -1")
        a(f"s_branch {L}_f_loop")
    for q in range(4):
        a.label(f"{L}_f_sp{q}")
        a(f"ds_read_b32 v{F_C}, v{F_PR}")
        a("s_waitcnt lgkmcnt(0)")
        a(f"v_cmp_lt_u32 vcc, v{F_C}, v{F_K}")
        a(f"s_cbranch_vccnz {L}_f_sp{q}")
        a(f"s_branch {L}_f_spb{q}")
        a.label(f"{L}_f_tl{q}")
        a("s_waitcnt vmcnt(0)")
        a(f"s_branch {L}_f_tlb{q}")
    a.label(f"{L}_f_done")
    stamp(2)
    a("s_mul_i32 s61, s7, 12288")
    a(f"s_add_u32 s61, s61, {L_FR}")
    a(f"v_mov_b32 v166, v{F_PR}")
    D_DW = 4
    D_AW = 6
    a("s_and_b32 s68, s2, 7")
    a("s_lshl_b32 s68, s68, 2")
    a("s_bfe_u32 s8, s2, 0x20003")
    a("s_add_u32 s68, s68, s8")
    a("s_lshr_b32 s69, s2, 5")
    a(f"v_lshrrev_b32 v{FT+3}, 3, v1")
    a(f"v_bfe_u32 v{FT+4}, v1, 4, 1")
    a(f"v_lshlrev_b32 v{FT+4}, 2, v{FT+4}")
    a(f"v_and_b32 v{FT+2}, 7, v1")
    a(f"v_xor_b32 v{FT+4}, v{FT+4}, v{FT+2}")
    a(f"v_lshlrev_b32 v{FT+4}, 4, v{FT+4}")
    a(f"v_lshl_add_u32 v{D_DW}, v{FT+3}, 10, v{FT+4}")
    a("s_lshl_b32 s8, s69, 7")
    a(f"v_add_u32 v{D_DW}, s8, v{D_DW}")
    a(f"v_add_u32 v{D_DW+1}, {8192 - 1024}, v{D_DW}")
    a(f"v_lshrrev_b32 v{FT+3}, 5, v1")
    a(f"v_bfe_u32 v{FT+4}, v1, 2, 2")
    a(f"v_lshl_add_u32 v{FT+3}, v{FT+3}, 2, v{FT+4}")
    a(f"v_lshlrev_b32 v{FT+3}, 7, v{FT+3}")
    a(f"v_bfe_u32 v{FT+4}, v1, 3, 1")
    a(f"v_lshl_add_u32 v{FT+3}, v{FT+4}, 6, v{FT+3}")
    a(f"v_bfe_u32 v{FT+4}, v1, 4, 1")
    a(f"v_lshl_add_u32 v{FT+3}, v{FT+4}, 5, v{FT+3}")
    a(f"v_and_b32 v{FT+4}, 3, v1")
    a(f"v_lshl_add_u32 v{FT+3}, v{FT+4}, 3, v{FT+3}")
    a("s_lshl_b32 s8, s7, 5")
    a("s_and_b32 s8, s8, 64")
    a(f"v_xor_b32 v{FT+3}, s8, v{FT+3}")
    a(f"v_add_u32 v{D_AW}, s61, v{FT+3}")
    a(f"v_xor_b32 v{D_AW+1}, 64, v{D_AW}")
    a("s_lshl_b32 s65, s7, 14")
    a(f"v_add_u32 v10, s65, v{FT+3}")
    a(f"v_xor_b32 v11, 64, v10")
    a("s_lshl_b32 s8, s4, 1")
    a(f"s_mul_i32 s8, s8, {AF_KSTEPS}")
    a("s_add_u32 s8, s8, s60")
    a("s_lshl_b32 s8, s8, 10")
    a(f"s_add_u32 s8, s8, {WS_AF + 32*1024}")
    a(f"s_add_u32 s9, s8, {AF_KSTEPS*1024}")
    a(f"s_mov_b32 s10, 0x{f2u(GC1):08x}")
    a(f"v_mov_b32 v{FT+8}, 0x{f2u(GC0):08x}")
    G = F_B[0]
    for u in range(3):
        if u == 2:
            a("s_cmp_eq_u32 s7, 3")
            a(f"s_cbranch_scc1 {L}_f_gd")
        for sx in range(2):
            A = F_ACC + 16 * (2 * u + sx)
            for r in range(8):
                a(f"v_mul_f32 v{G+r}, v{A+r}, v{A+r}")
            for r in range(8):
                a(f"v_fma_f32 v{G+r}, v{G+r}, s10, v{FT+8}")
            for r in range(8):
                a(f"v_mul_f32 v{G+r}, v{G+r}, v{A+r}")
            for r in range(8):
                a(f"v_exp_f32 v{G+r}, v{G+r}")
            for r in range(8):
                a(f"v_mul_f32 v{A+r}, v{A+r}, v{A+8+r}")
            for r in range(8):
                a(f"v_add_f32 v{G+r}, 1.0, v{G+r}")
            for r in range(8):
                a(f"v_rcp_f32 v{G+r}, v{G+r}")
            a("s_nop 0")
            for r in range(8):
                a(f"v_mul_f32 v{A+r}, v{A+r}, v{G+r}")
            for r in range(4):
                a(f"v_cvt_pk_bf16_f32 v{A+8+r}, v{A+2*r}, v{A+2*r+1}")
            a(f"buffer_store_dwordx4 {vr(A+8,4)}, v2, {sr(R_WS)}, s{8+sx} offen offset:{1024*u} sc1")
    a.label(f"{L}_f_gd")
    a("s_lshl_b32 s8, s4, 5")
    a("s_lshl_b32 s9, s5, 2")
    a("s_add_u32 s8, s8, s9")
    a("s_add_u32 s8, s8, s7")
    a(f"s_mul_i32 s8, s8, {fstride}")
    a(f"s_add_u32 s8, s8, {WS_FLAG + 65536}")
    a(f"v_mov_b32 v{FT}, 0")
    a(f"v_mov_b32 v{FT+1}, s6")
    a("s_mov_b64 exec, 1")
    a("s_waitcnt vmcnt(0)")
    a(f"buffer_store_dword v{FT+1}, v{FT}, {sr(R_WS)}, s8 offen sc1")
    a("s_mov_b64 exec, -1")
    stamp(3)
    if "nodown" in dbg:
        prof_end()
        a("s_endpgm")
    D_W = [12, 20]
    D_XR = 28
    D_A = 36
    D_ACC = 100
    DT = 164
    a("s_cmp_eq_u32 s7, 3")
    a("s_cselect_b32 s71, 20, 22")
    a("s_lshl_b32 s8, s68, 1")
    a("s_add_u32 s8, s8, s69")
    a("s_and_b32 s8, s8, 7")
    a("s_mul_i32 s8, s8, s71")
    a("s_lshr_b32 s8, s8, 3")
    a("s_mul_i32 s70, s7, 22")
    a("s_lshl_b32 s12, s70, 14")
    a("s_add_u32 s9, s70, s71")
    a("s_lshl_b32 s13, s9, 14")
    a("s_add_u32 s8, s8, s70")
    a("s_lshl_b32 s72, s8, 14")
    a(f"s_mul_i32 s74, s68, {2 * AF_KSTEPS * 1024}")
    a(f"s_add_u32 s74, s74, {WS_AF}")
    a(f"s_add_u32 s14, s74, {32 * 1024}")
    a("s_mov_b32 s73, s72")
    a(f"s_mul_i32 s8, s17, {AF_KSTEPS * 1024}")
    a("v_add_u32 v3, s8, v2")
    a(f"s_sub_u32 s8, {AF_KSTEPS * 1024}, s8")
    a("v_add_u32 v9, s8, v2")

    def issue_w(slot):
        return [f"s_add_u32 m0, s61, {slot * 2048}", "s_nop 0",
                f"buffer_load_dwordx4 v{D_DW}, {sr(R_WD)}, s72 offen lds",
                f"buffer_load_dwordx4 v{D_DW+1}, {sr(R_WD)}, s72 offen offset:1024 lds",
                "s_add_u32 s72, s72, 16384", "s_cmp_eq_u32 s72, s13", "s_cselect_b32 s72, s12, s72"]

    def issue_a(slot):
        return ["s_lshr_b32 s8, s73, 4", "s_add_u32 s8, s8, s14",
                f"buffer_load_dwordx4 {vr(D_A+8*slot,4)}, v3, {sr(R_WS)}, s8 offen sc1",
                f"buffer_load_dwordx4 {vr(D_A+8*slot+4,4)}, v9, {sr(R_WS)}, s8 offen sc1",
                "s_add_u32 s73, s73, 16384", "s_cmp_eq_u32 s73, s13", "s_cselect_b32 s73, s12, s73"]

    def reads_d(k, ring, aw):
        b = D_W[k % 2]
        return [f"ds_read_b64_tr_b16 {vr(b+4*q+2*e,2)}, v{aw+q} offset:{(k % ring) * 2048 + e * 1024}" for q in range(2) for e in range(2)]

    def mfma_d(k):
        b = D_W[k % 2]
        A = D_A + 8 * k
        return [f"v_mfma_f32_32x32x16_bf16 {vr(D_ACC+16*(2*q+sx),16)}, {vr(b+4*q,4)}, {vr(A+4*sx,4)}, {vr(D_ACC+16*(2*q+sx),16)}"
                for q in range(2) for sx in range(2)]

    a.label(f"{L}_xfree")
    a(f"ds_read_b32 v{DT+1}, v166")
    a("s_waitcnt lgkmcnt(0)")
    a(f"v_cmp_gt_u32 vcc, 34, v{DT+1}")
    a(f"s_cbranch_vccnz {L}_xfree")
    for k in range(RING):
        if 2 * k > thr:
            a(f"s_waitcnt vmcnt({thr})")
        for l in issue_w(k):
            a(l)
    a("s_lshl_b32 s8, s68, 1")
    a("s_and_b32 s9, s7, 1")
    a("s_add_u32 s8, s8, s9")
    a("s_lshl_b32 s8, s8, 15")
    a("s_lshl_b32 s9, s69, 7")
    a("s_add_u32 s8, s8, s9")
    a("s_lshr_b32 s9, s7, 1")
    a("s_lshl_b32 s9, s9, 6")
    a("s_add_u32 s75, s8, s9")
    a(f"v_and_b32 v{DT}, 31, v1")
    a(f"v_lshlrev_b32 v{DT}, 10, v{DT}")
    a(f"v_lshrrev_b32 v{DT+1}, 5, v1")
    a(f"v_lshl_add_u32 v8, v{DT+1}, 4, v{DT}")
    for i in range(0, 64, 2):
        a(f"v_mov_b64 {vr(D_ACC+i,2)}, 0")
    a("s_lshl_b32 s8, s68, 2")
    a("s_add_u32 s8, s8, s7")
    a(f"s_mul_i32 s8, s8, {8 * fstride}")
    a(f"s_add_u32 s8, s8, {WS_FLAG + 65536}")
    a("s_mov_b64 exec, 0xff")
    poll_line(f"{L}_hpoll", "s8", DT, 8, hsleep)
    a("s_mov_b64 exec, -1")
    stamp(4)
    for k in range(RING):
        for l in issue_a(k):
            a(l)
    for l in reads_d(0, RING, D_AW):
        a(l)
    a("s_waitcnt vmcnt(0)")
    a.label(f"{L}_d_loop")
    for k in range(RING):
        m = mfma_d(k)
        a(f"s_waitcnt vmcnt({4 * (RING - 2)}) lgkmcnt(0)")
        a(m[0])
        for l in reads_d(k + 1, RING, D_AW):
            a(l)
        a(m[1])
        for l in issue_w(k):
            a(l)
        a(m[2])
        a(m[3])
        if k % 2 == 1:
            a("s_sub_u32 s71, s71, 2")
            a("s_cmp_eq_u32 s71, 0")
            a(f"s_cbranch_scc1 {L}_d_done")
        for l in issue_a(k):
            a(l)
        if k % 2 == 1:
            a(f"s_cmp_le_u32 s71, {RING}")
            a(f"s_cselect_b32 s{R_WD+2}, 0, s{R_WD+2}")
            a(f"s_cselect_b32 s{R_WS+2}, 0, s{R_WS+2}")
    a(f"s_branch {L}_d_loop")
    a.label(f"{L}_d_done")
    a(f"s_mov_b32 s{R_WS+2}, {WS_SIZE}")
    stamp(5)
    a("s_lshl_b32 s8, s7, 17")
    a("s_mov_b32 m0, s65")
    a("s_mov_b32 s9, 8")
    a.label(f"{L}_wo")
    a(f"s_waitcnt vmcnt({thr})")
    a(f"buffer_load_dwordx4 v{D_DW}, {sr(R_WO)}, s8 offen lds")
    a(f"buffer_load_dwordx4 v{D_DW+1}, {sr(R_WO)}, s8 offen offset:1024 lds")
    a("s_add_u32 m0, m0, 2048")
    a("s_add_u32 s8, s8, 16384")
    a("s_sub_u32 s9, s9, 1")
    a("s_cmp_lg_u32 s9, 0")
    a(f"s_cbranch_scc1 {L}_wo")
    a(f"buffer_load_dwordx4 {vr(D_XR,4)}, v8, {sr(R_X)}, s75 offen")
    a(f"buffer_load_dwordx4 {vr(D_XR+4,4)}, v8, {sr(R_X)}, s75 offen offset:32")
    a("s_lshl_b32 s73, s7, 13")
    a("s_add_u32 s73, s73, s74")
    a("s_add_u32 s74, s73, 4096")
    a(f"s_mov_b32 s22, {SPIN_MAX >> 4}")
    a("s_mov_b32 s20, 0")
    a("s_mov_b64 s[18:19], -1")
    a(f"v_and_b32 v{DT}, 7, v1")
    a(f"s_mov_b32 s8, {L_MISC}")
    a(f"v_lshl_add_u32 v{DT}, v{DT}, 2, s8")
    a("v_add_u32 v4, s65, v2")
    for t in range(1, 4):
        a(f"v_xor_b32 v{4+t}, {t * 16384}, v4")
    a(f"v_and_b32 v{DT+2}, 1, v1")
    a(f"v_mul_u32_u24 v{DT+2}, {AF_KSTEPS * 1024 - 512}, v{DT+2}")
    a(f"v_and_b32 v{DT+1}, 15, v1")
    a(f"v_lshl_add_u32 v{DT+2}, v{DT+1}, 9, v{DT+2}")
    stamp(6)
    a.label(f"{L}_await")
    a(f"ds_read_b32 v{DT+1}, v{DT}")
    a("s_waitcnt lgkmcnt(0)")
    a(f"v_cmp_gt_u32 vcc, {othr}, v{DT+1}")
    a(f"s_cbranch_vccz {L}_opoll")
    a("s_sleep 4")
    a(f"s_branch {L}_await")
    a.label(f"{L}_oagain")
    if osleep:
        a(f"s_sleep {osleep}")
    a("s_sub_u32 s22, s22, 1")
    a("s_cselect_b64 s[18:19], 0, s[18:19]")
    a.label(f"{L}_opoll")
    a("s_andn2_b32 s21, 0x5555, s20")
    if hyb:
        a("s_bcnt1_i32_b32 s8, s21")
        a(f"s_cmp_le_u32 s8, {hyb}")
        a(f"s_cbranch_scc1 {L}_odir")
    a("s_mov_b64 exec, 0xffff")
    a(f"buffer_load_dword v{DT+3}, v{DT+2}, {sr(R_WS)}, s73 offen sc1")
    a("s_waitcnt vmcnt(0)")
    a(f"v_cmp_eq_u32 vcc, -1, v{DT+3}")
    a("s_mov_b64 exec, -1")
    a("s_and_b32 s8, vcc_lo, s18")
    a("s_lshr_b32 s9, s8, 1")
    a("s_or_b32 s8, s8, s9")
    a("s_andn2_b32 s21, s21, s8")
    a(f"s_cbranch_scc0 {L}_oagain")
    a.label(f"{L}_odir")
    stamp(7)
    for k in range(8):
        a(f"s_bitcmp0_b32 s21, {2*k}")
        a(f"s_cbranch_scc1 {L}_ol{k}")
        for sx in range(2):
            a(f"buffer_load_dwordx4 {vr(D_A+8*k+4*sx,4)}, v{9 if sx else 3}, {sr(R_WS)}, s{73 + k//4} offen offset:{(k%4)*1024} sc1")
        a.label(f"{L}_ol{k}")
    a("s_waitcnt vmcnt(0)")
    for k in range(8):
        A = D_A + 8 * k
        a(f"s_bitcmp0_b32 s21, {2*k}")
        a(f"s_cbranch_scc1 {L}_om{k}")
        for l in reads_d(k, 8, 10):
            a(l)
        a(f"v_max3_u32 v{DT}, v{A}, v{A+1}, v{A+2}")
        a(f"v_max3_u32 v{DT+1}, v{A+3}, v{A+4}, v{A+5}")
        a(f"v_max3_u32 v{DT}, v{DT}, v{A+6}, v{A+7}")
        a(f"v_max_u32 v{DT}, v{DT}, v{DT+1}")
        a(f"v_cmp_eq_u32 vcc, -1, v{DT}")
        a("s_and_b64 vcc, vcc, s[18:19]")
        a("s_waitcnt lgkmcnt(0)")
        a(f"s_cbranch_scc1 {L}_om{k}")
        for l in mfma_d(k):
            a(l)
        a(f"s_bitset1_b32 s20, {2*k}")
        a.label(f"{L}_om{k}")
    a("s_cmp_lg_u32 s20, 0x5555")
    a(f"s_cbranch_scc1 {L}_oagain")
    stamp(8)
    for i in range(8):
        a(f"v_lshlrev_b32 v{D_W[0]+2*i}, 16, v{D_XR+i}")
        a(f"v_and_b32 v{D_W[0]+2*i+1}, 0xffff0000, v{D_XR+i}")
    for t in range(1, 4):
        for g in range(4):
            a(f"ds_write_b128 v4, {vr(D_ACC+16*t+4*g,4)} offset:{t*4096 + g*1024}")
    a("s_waitcnt lgkmcnt(0)")
    a("s_barrier")
    for t in range(1, 4):
        for g in range(4):
            a(f"ds_read_b128 {vr(D_A+16*t+4*g,4)}, v{4+t} offset:{t*4096 + g*1024}")
    R = D_ACC
    for p in range(1, 4):
        a(f"s_waitcnt lgkmcnt({12 - 4*p})")
        for i in range(0, 16, 2):
            a(f"v_pk_add_f32 {vr(R+i,2)}, {vr(R+i,2)}, {vr(D_A+16*p+i,2)}")
    a("s_nop 1")
    for g2 in range(2):
        for i in range(4):
            a(f"v_permlane32_swap_b32 v{R+8*g2+i}, v{R+8*g2+4+i}")
    a("s_nop 1")
    for i in range(0, 16, 2):
        a(f"v_pk_add_f32 {vr(R+i,2)}, {vr(R+i,2)}, {vr(D_W[0]+i,2)}")
    for i in range(8):
        a(f"v_cvt_pk_bf16_f32 v{D_XR+i}, v{R+2*i}, v{R+2*i+1}")
    a(f"buffer_store_dwordx4 {vr(D_XR,4)}, v8, {sr(R_OUT)}, s75 offen")
    a(f"buffer_store_dwordx4 {vr(D_XR+4,4)}, v8, {sr(R_OUT)}, s75 offen offset:32")
    prof_end()
    a.label(f"{L}_last")
    a("s_endpgm")
    head, tail = a.lines[:ffn_start], a.lines[ffn_start:]
    if "f_nomfma" in dbg:
        tail = [l for l in tail if "v_mfma" not in l]
    if "f_nodma" in dbg:
        tail = [l for l in tail if not l.rstrip().endswith(" lds")]
    if "f_nolds" in dbg:
        tail = [l for l in tail if "ds_read_b128" not in l and "ds_read_b64" not in l]
    if "f_nosync" in dbg:
        tail = [l for l in tail if not l.strip().startswith(f"s_cbranch_vccnz {L}_f_sp")]
    if "f_nogelu" in dbg:
        tail = [l for l in tail if not any(k in l for k in ("v_exp", "v_rcp", "v_mul_f32", "v_fma_f32", "v_add_f32"))]
    if "nosc1" in dbg:
        head = [l.replace(" sc1", "") if "load_dwordx4" in l else l for l in head]
    ja = head.index(f"{L}_loop:"); jb = head.index(f"{L}_done:")
    lp = head[ja:jb]
    if "k_nodma" in dbg:
        lp = [l for l in lp if not l.rstrip().endswith(" lds")]
    if "k_nopv" in dbg:
        lp = [l for l in lp if "smfmac" not in l]
    if "k_noqk" in dbg:
        lp = [l for l in lp if "v_mfma" not in l]
    if "k_noexp" in dbg:
        lp = [l.replace("v_exp_f32", "v_sqrt_f32") if False else l for l in lp]
        lp = [("    v_exp_f32 v142, v143" if "v_exp_f32" in l else l) for l in lp]
    if "k_nowait" in dbg:
        lp = [l for l in lp if "vmcnt" not in l]
    if "k_nosync" in dbg:
        lp = [l for l in lp if not l.strip().startswith(f"s_cbranch_vccnz {L}_sp1")]
    head = head[:ja] + lp + head[jb:]
    ia = head.index(f"{L}_a_nopois:"); ib = head.index(f"{L}_a_nost:")
    mid = head[ia:ib]
    if "a_nomfma" in dbg:
        mid = [l for l in mid if "v_mfma" not in l]
    if "a_no16" in dbg:
        mid = [l for l in mid if "16x16x32" not in l]
    if "a_nostat" in dbg:
        mid = [l for l in mid if not any(k in l for k in ("v_fmac", "v_lshlrev_b32 v4", "0xffff0000"))]
    if "a_nolds" in dbg:
        mid = [l for l in mid if "ds_read" not in l]
    if "a_nodma" in dbg:
        mid = [l for l in mid if not l.rstrip().endswith(" lds")]
    if "a_nobar" in dbg:
        mid = [l for l in mid if "s_barrier" not in l]
    head = head[:ia] + mid + head[ib:]
    a.lines = head + tail
    return a.text(), kernel_desc(label, 168), (label, 256, 768, LDS_BYTES)


def build(list_form=False, **kw):
    import os
    ref = "cdna_kernels/" + NAME + ".s.ref"
    HEADER = open(ref).read().split("; Override launch geometry")[0] if os.path.exists(ref) else "; dev"
    b, d, l = gen(**kw)
    out = [HEADER.rstrip(), f"; @launch " + (f"kernel={l[0]} " if list_form else "") + f"grid=({l[1]},1,1) block=({l[2]},1,1) lds={l[3]}", '.amdgcn_target "amdgcn-amd-amdhsa--gfx950"', b,
           '.section .rodata,"a"', ".p2align 6", d]
    return "\n".join(out)


if __name__ == "__main__":
    import sys
    open(sys.argv[1] if len(sys.argv) > 1 else "m0.s", "w").write(build())
    open("m_prof.s", "w").write(build(prof=True))
```
